```python
import torch

def _softmax(x, axis=-1):
    return torch.softmax(x, dim=axis)
def _gelu(x):
    return torch.nn.functional.gelu(x, approximate="tanh")
def _silu(x):
    return torch.nn.functional.silu(x)
def _sigmoid(x):
    return torch.sigmoid(x)
def _layernorm(x, axis=-1, eps=1e-5):
    m = x.mean(dim=axis, keepdim=True)
    v = x.var(dim=axis, keepdim=True, unbiased=False)
    return (x - m) / torch.sqrt(v + eps)
def _scatter_add(tgt, idx, src, axis=0):
    return tgt.clone().index_add_(axis, idx, src)
def _segment_sum(src, seg, n):
    out = torch.zeros((n,) + src.shape[1:], dtype=src.dtype)
    return out.index_add_(0, seg, src)
def _pad(x, pw):
    flat = tuple(v for pair in reversed(pw) for v in pair)
    return torch.nn.functional.pad(x, flat)

kernel_name = 'sequential_preLN__spectral_gfnet__mixer_s_mlp__prompt'

def setup_inputs():

    _w = (lambda a: (lambda t: t.to(torch.bfloat16) if t.is_floating_point() else t)(torch.as_tensor(a)))
    def _A_setup():
        B, S, D = 1, 2048, 640
        Df = D // 2 + 1
        return {
            "x": _w((lambda *s: torch.randn(*s, dtype=torch.bfloat16) * 0.05)(B, S, D)),
            "w_r": _w((lambda *s: torch.randn(*s, dtype=torch.bfloat16) * 0.4)(S, Df) * 0.02),
            "w_i": _w((lambda *s: torch.randn(*s, dtype=torch.bfloat16) * 0.4)(S, Df) * 0.02),
        }
    _A_in = _A_setup()

    def _B_setup():
        B, S, D, F = 1, 2048, 640, 1536
        return {
            "x":  _w((lambda *s: torch.randn(*s, dtype=torch.bfloat16) * 0.05)(B, S, D)),
            "w1": _w((lambda *s: torch.randn(*s, dtype=torch.bfloat16) * 0.8)(D, D) * (D ** -0.5)),
            "w2": _w((lambda *s: torch.randn(*s, dtype=torch.bfloat16) * 0.8)(D, D) * (D ** -0.5)),
            "w3": _w((lambda *s: torch.randn(*s, dtype=torch.bfloat16) * 0.8)(D, F) * (D ** -0.5)),
            "w4": _w((lambda *s: torch.randn(*s, dtype=torch.bfloat16) * 0.8)(F, D) * (F ** -0.5)),
        }
    _B_in = _B_setup()

    return {
        "A_x": _A_in["x"],
        "A_w_r": _A_in["w_r"],
        "A_w_i": _A_in["w_i"],
        "B_x": _B_in["x"],
        "B_w1": _B_in["w1"],
        "B_w2": _B_in["w2"],
        "B_w3": _B_in["w3"],
        "B_w4": _B_in["w4"],
    }

def reference(A_x, A_w_r, A_w_i, B_x, B_w1, B_w2, B_w3, B_w4):
    def _A_ref(x, w_r, w_i):
        B, S, D = x.shape
        X = (lambda x, axes=(-2,-1): torch.fft.rfft2(x.float(), dim=axes))(x, axes=(-2, -1))
        W = w_r + 1j * w_i
        X = X * W
        y = (lambda x, s, axes=(-2,-1): torch.fft.irfft2(x, s=s, dim=axes).to(torch.bfloat16))(X, (S, D), axes=(-2, -1))
        return y

    def _B_ref(x, w1, w2, w3, w4):
        B, S, D = x.shape
        h = _gelu(_layernorm(x, axis=-1) @ w1)
        c = D // 4
        g0 = _pad(h[:, :, 0*c:1*c], ((0, 0), (1, 0), (0, 0)))[:, :S, :]
        g1 = _pad(h[:, :, 1*c:2*c], ((0, 0), (0, 1), (0, 0)))[:, 1:, :]
        g2 = _pad(h[:, :, 2*c:3*c], ((0, 0), (2, 0), (0, 0)))[:, :S, :]
        g3 = _pad(h[:, :, 3*c:   ], ((0, 0), (0, 2), (0, 0)))[:, 2:, :]
        hs = torch.concatenate([g0, g1, g2, g3], axis=-1) @ w2
        x1 = x + hs
        h2 = _gelu(_layernorm(x1, axis=-1) @ w3) @ w4
        return x1 + h2

    x = A_x
    h = x + _A_ref(_layernorm(x, axis=-1), A_w_r, A_w_i)
    h2 = h + _B_ref(_layernorm(h, axis=-1), B_w1, B_w2, B_w3, B_w4)
    return h2
```

```python
import sys
from dsl import *
from layout import *
NAME = "sequential_preLN__spectral_gfnet__mixer_s_mlp__prompt"
def multi_kernel(name, progs, vgprs, agprs=0, sgprs=102):
    st = {}
    body = "".join(finalize(p, st) for p in progs)
    print(name, "vgprs", vgprs, "agprs", agprs, st, file=sys.stderr)
    acc = (vgprs + 3) // 4 * 4
    nfv = acc + agprs if agprs else vgprs
    code = f".globl {name}\n.p2align 8\n.type {name},@function\n{name}:\n{body}  s_endpgm\n"
    desc = f""".p2align 6
.amdhsa_kernel {name}
  .amdhsa_next_free_vgpr {nfv}
  .amdhsa_next_free_sgpr {sgprs}
  .amdhsa_accum_offset {acc}
  .amdhsa_group_segment_fixed_size 0
  .amdhsa_kernarg_size 88
  .amdhsa_user_sgpr_count 2
  .amdhsa_user_sgpr_kernarg_segment_ptr 1
  .amdhsa_system_sgpr_workgroup_id_x 1
.end_amdhsa_kernel
"""
    return code, desc
def build(kernels, path, header=""):
    s = header
    for k in kernels:
        s += f"; @launch kernel={k[0]} grid=({k[4]},1,1) block=({k[5]},1,1) lds={k[6]}\n"
    s += '.amdgcn_target "amdgcn-amd-amdhsa--gfx950"\n.text\n'
    descs = ""
    for k in kernels:
        c, d = multi_kernel(k[0], k[1], k[2], k[3])
        s += c; descs += d
    s += '.section .rodata,"a"\n' + descs
    open(path, "w").write(s)
```

```python
import re

TRANS = ("v_exp_f32", "v_log_f32", "v_rcp_f32", "v_rsq_f32", "v_sqrt_f32", "v_sin_f32", "v_cos_f32")

def _regs(tok):
    tok = tok.strip()
    if tok.startswith("-"):
        tok = tok[1:]
    m = re.fullmatch(r"abs\((.*)\)", tok)
    if m:
        tok = m.group(1)
    m = re.fullmatch(r"\|(.*)\|", tok)
    if m:
        tok = m.group(1)
    m = re.fullmatch(r"([vsa])(\d+)", tok)
    if m:
        return [(m.group(1), int(m.group(2)))]
    m = re.fullmatch(r"([vsa])\[(\d+):(\d+)\]", tok)
    if m:
        return [(m.group(1), i) for i in range(int(m.group(2)), int(m.group(3)) + 1)]
    if tok == "vcc":
        return [("vcc", 0)]
    if tok == "exec":
        return [("exec", 0)]
    if tok == "m0":
        return [("m0", 0)]
    return []

class Ins:
    __slots__ = ("text", "op", "w", "r", "cls", "passes", "srcc", "srcab", "dpp", "wide", "lds_dma", "tag")
    def __init__(self, text, tag=None):
        self.text = text
        self.tag = tag
        body = text.split(";")[0].strip()
        parts = body.split(None, 1)
        op = parts[0]
        self.op = op
        rest = parts[1] if len(parts) > 1 else ""
        toks = []
        depth = 0
        cur = ""
        for ch in rest:
            if ch in "[(":
                depth += 1
            if ch in "])":
                depth -= 1
            if ch == "," and depth == 0:
                toks.append(cur.strip()); cur = ""
            else:
                cur += ch
        if cur.strip():
            toks.append(cur.strip())
        mods = ""
        if toks:
            last = toks[-1].split(None, 1)
            toks[-1] = last[0]
            if len(last) > 1:
                mods = last[1]
        R = [_regs(t) for t in toks]
        self.w, self.r = [], []
        self.passes = 0
        self.srcc, self.srcab = [], []
        self.dpp = ("row_" in mods) or ("quad_perm" in mods) or ("wave_" in mods) or op.endswith("_dpp")
        self.wide = False
        self.lds_dma = False
        flat = lambda L: [x for l in L for x in l]
        if op.startswith("v_mfma"):
            self.cls = "mfma"
            self.passes = 8 if "32x32" in op else 4
            self.w = R[0]; self.r = flat(R[1:]); self.srcc = R[3]; self.srcab = R[1] + R[2]
        elif op.startswith("v_"):
            self.cls = "trans" if op.replace("_e32", "").replace("_e64", "") in TRANS else ("dot" if op.startswith("v_dot") else "valu")
            self.w = list(R[0]); self.r = flat(R[1:])
            if op.startswith(("v_fmac", "v_pk_fmac", "v_dot2c", "v_writelane")):
                self.r += R[0]
            if op.startswith(("v_permlane16_swap", "v_permlane32_swap", "v_swap")):
                self.w = R[0] + R[1]; self.r = R[0] + R[1]
            if op.startswith(("v_add_co", "v_sub_co", "v_addc_co", "v_subb_co")):
                self.w = R[0] + R[1]; self.r = flat(R[2:])
            if self.dpp:
                self.r += R[0]
            if op.startswith("v_cndmask") and len(toks) == 3:
                self.r += [("vcc", 0)]
        elif op.startswith(("buffer_load", "global_load")):
            self.cls = "vmem"
            if " lds" in (" " + mods) or "_lds_" in op:
                self.lds_dma = True
                self.r = flat(R) + [("m0", 0)]
            else:
                self.w = R[0]; self.r = flat(R[1:])
        elif op.startswith(("buffer_store", "global_store", "buffer_atomic", "global_atomic")):
            self.cls = "vmem"
            self.r = flat(R)
            self.wide = op.endswith(("x3", "x4"))
            if "atomic" in op and "sc0" in mods:
                self.w = R[0]
        elif op.startswith(("buffer_inv", "buffer_wbl2")):
            self.cls = "vmem"
        elif op.startswith("ds_"):
            self.cls = "ds"
            if op.startswith(("ds_read", "ds_bpermute", "ds_permute", "ds_swizzle")):
                self.w = R[0]; self.r = flat(R[1:])
            else:
                self.r = flat(R)
        elif op.startswith(("s_load", "s_memtime", "s_memrealtime", "s_buffer_load")):
            self.cls = "smem"
            self.w = R[0]; self.r = flat(R[1:])
        elif op in ("s_waitcnt", "s_nop", "s_barrier", "s_endpgm", "s_sleep", "s_setprio", "s_branch") or op.startswith("s_cbranch"):
            self.cls = "ctl"
        elif op.startswith("s_cmp") or op.startswith("s_bitcmp"):
            self.cls = "salu"
            self.r = flat(R)
        elif op.startswith("s_"):
            self.cls = "salu"
            self.w = list(R[0]); self.r = flat(R[1:])
            if "saveexec" in op:
                self.w += [("exec", 0)]
            if op.startswith(("s_addk", "s_mulk")):
                self.r += R[0]
        elif op.endswith(":"):
            self.cls = "label"
        else:
            raise ValueError("unknown instruction: " + text)

def is_valu(i):
    return i.cls in ("valu", "trans", "dot")

class Prog:
    def __init__(self):
        self.items = []
    def __call__(self, text, tag=None):
        for line in text.strip().split("\n"):
            line = line.strip()
            if line:
                self.items.append(Ins(line, tag))
        return self
    def wait_tag(self, tag):
        self.items.append(("wait_tag", tag))
    def wait_lds(self):
        self.items.append(Ins("s_waitcnt lgkmcnt(0)"))
    def extend(self, other):
        self.items.extend(other.items)
    def comment(self, c):
        self.items.append(("comment", c))

def interleave(*progs, weights=None):
    out = Prog()
    n = [len(p.items) for p in progs]
    pos = [0] * len(progs)
    total = sum(n)
    for _ in range(total):
        best, bk = None, None
        for k in range(len(progs)):
            if pos[k] < n[k]:
                frac = (pos[k] + 0.5) / n[k]
                if best is None or frac < best:
                    best, bk = frac, k
        out.items.append(progs[bk].items[pos[bk]])
        pos[bk] += 1
    return out

def _need(prev, cur):
    n = 0
    pw, cw, cr = set(prev.w), set(cur.w), set(cur.r)
    vec = lambda s: {x for x in s if x[0] in "va"}
    sc = lambda s: {x for x in s if x[0] in ("s", "vcc")}
    if prev.cls == "mfma":
        big = 8 if prev.passes == 4 else 12
        if cur.cls == "mfma":
            if pw & set(cur.srcab):
                n = max(n, big)
            if pw & set(cur.srcc):
                if not (prev.w == cur.srcc and prev.passes == cur.passes):
                    n = max(n, big - 2)
            elif pw & cw:
                n = max(n, big)
        elif is_valu(cur) or cur.cls in ("vmem", "ds"):
            if pw & (cr | cw):
                n = max(n, big)
            if is_valu(cur) and set(prev.srcc) & cw:
                n = max(n, 3 if prev.passes == 4 else 7)
            if cur.cls in ("vmem", "ds") and set(prev.srcc) & cw:
                n = max(n, 3 if prev.passes == 4 else 7)
    if is_valu(prev):
        if cur.cls == "mfma" and vec(pw) & cr:
            n = max(n, 3 if prev.cls == "dot" else 2)
        if prev.cls == "trans" and is_valu(cur) and cur.cls != "trans" and pw & cr:
            n = max(n, 1)
        if prev.cls == "dot" and (pw & (cr | cw)):
            if not (cur.op == prev.op and not (pw & set(cur.r[:2]))):
                n = max(n, 3)
        if is_valu(cur) and cur.dpp and vec(pw) & cr:
            n = max(n, 2)
        if cur.op.startswith("v_permlane") and vec(pw) & cr:
            n = max(n, 2)
        if cur.op.startswith(("v_readlane", "v_readfirstlane")) and vec(pw) & cr:
            n = max(n, 1)
        if sc(pw):
            if is_valu(cur) and sc(pw) & cr:
                n = max(n, 4 if cur.op.startswith(("v_readlane", "v_writelane")) else 2)
            if cur.cls == "vmem" and sc(pw) & cr:
                n = max(n, 5)
            if cur.cls in ("salu", "smem") and sc(pw) & cr:
                n = max(n, 1)
        if ("sdwa" in prev.text or "op_sel:" in prev.text and "pk_" not in prev.op) and is_valu(cur) and pw & (cr | cw):
            n = max(n, 1)
    if prev.cls == "vmem" and prev.wide and vec(set(prev.r)) & cw:
        n = max(n, 2)
    if prev.cls == "ds" and prev.op.endswith(("b128", "b96")) and not prev.w and vec(set(prev.r)) & cw:
        n = max(n, 2)
    if prev.cls == "salu" and ("m0", 0) in pw and cur.lds_dma:
        n = max(n, 1)
    return n

def finalize(prog, stats=None):
    out = []
    lines = []
    vm = []
    lg = []
    def emit(i):
        out.append(i); lines.append("  " + i.text if i.cls != "label" else i.text)
    def states(i):
        if i.op == "s_nop":
            return int(i.text.split()[1], 0) + 1
        return 0 if i.cls == "label" else 1
    def wait(vn=None, ln=None):
        t = "s_waitcnt"
        if vn is not None:
            t += f" vmcnt({min(vn, 63)})"
            del vm[:len(vm) - min(vn, 63) if min(vn, 63) < len(vm) else 0]
        if ln is not None:
            t += f" lgkmcnt({min(ln, 15)})"
            del lg[:len(lg) - min(ln, 15) if min(ln, 15) < len(lg) else 0]
        emit(Ins(t))
    for it in prog.items:
        if isinstance(it, tuple):
            if it[0] == "comment":
                lines.append("  ; " + it[1])
            elif it[0] == "wait_tag":
                idx = max((k for k, e in enumerate(vm) if e[1] == it[1]), default=-1)
                if idx >= 0:
                    wait(vn=len(vm) - 1 - idx)
            continue
        i = it
        if i.op == "s_waitcnt":
            m = re.search(r"vmcnt\((\d+)\)", i.text)
            if m:
                k = int(m.group(1)); del vm[:max(0, len(vm) - k)]
            m = re.search(r"lgkmcnt\((\d+)\)", i.text)
            if m:
                k = int(m.group(1)); del lg[:max(0, len(lg) - k)]
            emit(i); continue
        touched = set(i.r) | set(i.w)
        vn = ln = None
        idx = max((k for k, e in enumerate(vm) if e[0] & touched), default=-1)
        if idx >= 0:
            vn = len(vm) - 1 - idx
        idx = max((k for k, e in enumerate(lg) if e[0] & touched), default=-1)
        if idx >= 0:
            ln = 0 if any(e[1] for e in lg) else len(lg) - 1 - idx
        if i.cls == "vmem" and len(vm) >= 63:
            vn = min(vn if vn is not None else 62, 62)
        if vn is not None or ln is not None:
            wait(vn, ln)
        if i.cls not in ("label", "ctl"):
            need, dist = 0, 0
            for p in reversed(out[-24:]):
                if p.cls not in ("ctl", "label"):
                    need = max(need, _need(p, i) - dist)
                dist += states(p)
                if dist >= 14:
                    break
            while need > 0:
                k = min(need, 16)
                emit(Ins(f"s_nop {k-1}"))
                if stats is not None:
                    stats["nops"] = stats.get("nops", 0) + k
                need -= k
        emit(i)
        if i.cls == "vmem":
            vm.append((set(i.w), i.tag))
        elif i.cls == "ds":
            lg.append((set(i.w), False))
        elif i.cls == "smem":
            lg.append((set(i.w), True))
    if stats is not None:
        for i in out:
            stats[i.cls] = stats.get(i.cls, 0) + 1
    return "\n".join(lines) + "\n"

def kernel_text(name, prog, vgprs, agprs=0, sgprs=96, show=True):
    st = {}
    body = finalize(prog, st)
    if show:
        print(name, st)
    acc = (vgprs + 3) // 4 * 4
    nfv = acc + agprs if agprs else vgprs
    code = f""".text
.globl {name}
.p2align 8
.type {name},@function
{name}:
{body}  s_endpgm
"""
    desc = f""".p2align 6
.amdhsa_kernel {name}
  .amdhsa_next_free_vgpr {nfv}
  .amdhsa_next_free_sgpr {sgprs}
  .amdhsa_accum_offset {acc}
  .amdhsa_group_segment_fixed_size 0
  .amdhsa_kernarg_size 88
  .amdhsa_user_sgpr_count 2
  .amdhsa_user_sgpr_kernarg_segment_ptr 1
  .amdhsa_system_sgpr_workgroup_id_x 1
.end_amdhsa_kernel
"""
    return code, desc

class Alloc:
    def __init__(self, start, limit, kind="v"):
        self.n, self.limit, self.kind = start, limit, kind
        self.hi = start
    def get(self, count=1, align=1):
        self.n = (self.n + align - 1) // align * align
        r = self.n
        self.n += count
        self.hi = max(self.hi, self.n)
        assert self.n <= self.limit, f"out of {self.kind} registers"
        return r
    def mark(self):
        return self.n
    def release(self, m):
        self.n = m

def vr(b, n, k="v"):
    return f"{k}{b}" if n == 1 else f"{k}[{b}:{b+n-1}]"

_NO_SCC_W = ("s_mov", "s_mul_i32", "s_cselect", "s_movk", "s_mulk", "s_getreg", "s_mul_hi", "s_getpc", "s_setprio")
def _rw(i):
    r, w = set(i.r), set(i.w)
    if i.cls == "salu":
        if not i.op.startswith(_NO_SCC_W):
            w.add(("scc", 0))
        if i.op.startswith(("s_cselect", "s_addc", "s_subb")):
            r.add(("scc", 0))
    if i.cls in ("valu", "trans", "dot", "mfma", "vmem", "ds"):
        r.add(("exec", 0))
    if i.cls == "vmem":
        w.add(("vmq", 0))
    if i.cls == "smem":
        w.add(("smq", 0))
    if i.cls == "ds":
        region = i.tag or "lds"
        if i.w:
            r.add(("ldsmem", region))
        else:
            w.add(("ldsmem", region))
    return r, w

def _issue(i):
    if i.cls == "mfma": return 8
    if i.cls == "trans": return 8
    if i.cls in ("valu", "dot"): return 4.5
    if i.cls == "vmem": return 8
    return 4

def _lat(p, c, kind):
    if kind != "raw":
        return max(_issue(p), 4 * (_need(p, c) + 1))
    if p.cls == "mfma":
        if c.cls == "mfma" and p.w == c.srcc and not (set(p.w) & set(c.srcab)):
            return 4 * p.passes
        return 4 * p.passes + 24
    if p.cls == "ds": return 130
    if p.cls == "vmem": return 700
    if p.cls == "smem": return 900
    return max(_issue(p), 4 * (_need(p, c) + 1))

def _sched_region(ins):
    n = len(ins)
    if n <= 2:
        return ins
    rw = [_rw(i) for i in ins]
    preds = [dict() for _ in range(n)]
    lastw, readers = {}, {}
    for k, (r, w) in enumerate(rw):
        for x in r:
            if x in lastw:
                j = lastw[x]
                kind = "raw" if x[0] in ("v", "a", "s", "vcc", "m0") else "ord"
                preds[k][j] = max(preds[k].get(j, 0), _lat(ins[j], ins[k], kind))
        for x in w:
            if x in lastw:
                j = lastw[x]
                kind = "raw" if (x[0] in ("v", "a", "s") and ins[j].cls in ("mfma", "ds", "vmem", "smem") and not (ins[k].cls == "mfma" and ins[j].w == ins[k].srcc)) else "ord"
                preds[k][j] = max(preds[k].get(j, 0), _lat(ins[j], ins[k], kind))
            for j in readers.get(x, ()):
                if j != k:
                    preds[k][j] = max(preds[k].get(j, 0), _lat(ins[j], ins[k], "ord"))
        for x in r:
            readers.setdefault(x, []).append(k)
        for x in w:
            lastw[x] = k
            readers[x] = []
    succs = [[] for _ in range(n)]
    for k in range(n):
        for j, l in preds[k].items():
            succs[j].append((k, l))
    prio = [0.0] * n
    for k in range(n - 1, -1, -1):
        prio[k] = _issue(ins[k]) + max((l + prio[s] - _issue(ins[k]) for s, l in succs[k]), default=0)
    npred = [len(p) for p in preds]
    ready_t = [0.0] * n
    avail = [k for k in range(n) if npred[k] == 0]
    t, pipe_free = 0.0, 0.0
    order = []
    while avail:
        def start(k):
            s = max(t, ready_t[k])
            if ins[k].cls == "mfma":
                s = max(s, pipe_free)
            return s
        k = min(avail, key=lambda k: (start(k) - t > 2.0, start(k) if start(k) - t > 2.0 else 0, -prio[k], k))
        s = start(k)
        avail.remove(k)
        order.append(k)
        t = s + _issue(ins[k])
        if ins[k].cls == "mfma":
            pipe_free = s + 4 * ins[k].passes
        for c, l in succs[k]:
            ready_t[c] = max(ready_t[c], s + l)
            npred[c] -= 1
            if npred[c] == 0:
                avail.append(c)
    assert len(order) == n
    _sched_region.last_t = t
    return [ins[k] for k in order]

def schedule(prog, verbose=None):
    out = Prog()
    cur = []
    def flush():
        if cur:
            out.items.extend(_sched_region(list(cur)))
            if verbose and len(cur) > 2:
                import sys
                print(f"  [{verbose}] region of {len(cur)} instrs: est {_sched_region.last_t:.0f} cycles", file=sys.stderr)
            cur.clear()
    for it in prog.items:
        if isinstance(it, tuple) or it.cls in ("ctl", "label"):
            flush(); out.items.append(it)
        else:
            cur.append(it)
    flush()
    return out
```

```python
from dsl import *
from layout import *
from k1 import f32, srd
from k2 import MF
from k3 import gelu4, GK0, GK1

def unpack_pairs(p, src, acc, nt, lt):
    a = lambda f: acc + 4 * (f * nt + lt)
    for pr in range(2):
        for r in range(4):
            p(f"v_lshlrev_b32 v{a(2*pr)+r}, 16, v{src+4*pr+r}")
            p(f"v_and_b32 v{a(2*pr+1)+r}, 0xffff0000, v{src+4*pr+r}")
    for h in range(2):
        p(f"v_lshlrev_b32 v{a(4)+2*h}, 16, v{src+8+h}")
        p(f"v_and_b32 v{a(4)+2*h+1}, 0xffff0000, v{src+8+h}")

def gemm(name, kind):
    NF, NT, KS = {"k4": (5, 1, 20), "k5": (6, 2, 20), "k6": (5, 1, 48)}[kind]
    WB, AB = {"k4": (W2P, GB), "k5": (W3P, X1B), "k6": (W4P, UB)}[kind]
    CK = 4
    NCH = KS // CK
    CFR = CK * NF
    PW = CFR // 4
    CH = CFR * 1024
    SLOTS = min(NCH, 7)
    AHEAD = {"k4": 5, "k5": 3, "k6": 5}[kind]
    END = name.upper() + "_END"
    head = Prog()
    head(f"s_cmp_ge_u32 s2, 256\ns_cbranch_scc1 {END}")
    p = Prog()
    V = Alloc(1, 256)
    p("s_load_dwordx2 s[10:11], s[0:1], 80")
    if kind == "k6":
        p("s_load_dwordx2 s[4:5], s[0:1], 64")
    vc, vq, vl16, t0, t1, t2, t3 = (V.get() for _ in range(7))
    njb = 4 if kind == "k5" else 3
    p(f"""v_and_b32 v{vc}, 15, v0
          v_bfe_u32 v{vq}, v0, 4, 2
          v_and_b32 v{t0}, 63, v0
          v_lshlrev_b32 v{vl16}, 4, v{t0}
          v_lshrrev_b32 v{t0}, 6, v0
          v_readfirstlane_b32 s3, v{t0}
          s_and_b32 s28, s2, 7
          s_lshl_b32 s28, s28, 4
          s_lshr_b32 s30, s2, {3+njb}
          s_mul_i32 s30, s30, {4*NT}
          s_add_u32 s28, s28, s30
          s_mul_i32 s30, s3, {NT}
          s_add_u32 s28, s28, s30
          s_lshr_b32 s29, s2, 3
          s_and_b32 s29, s29, {(1<<njb)-1}
          s_mul_i32 s34, s29, {KS*NF*1024}
          s_mul_i32 s35, s3, {PW*1024}
          s_add_u32 s34, s34, s35
          s_add_u32 s34, s34, {WB}
          s_mul_i32 s36, s28, {KS*1024}
          s_add_u32 s36, s36, {AB}""")
    nb = (SLOTS * CH + 65535) // 65536
    vb = [vl16] + [V.get() for _ in range(nb - 1)]
    for n in range(1, nb):
        p(f"v_add_u32 v{vb[n]}, {65536*n}, v{vl16}")
    va = None
    if kind == "k4":
        va = V.get(4)
        p(f"s_lshl_b32 s30, s28, 4\nv_add_u32 v{t0}, s30, v{vc}\nv_mov_b32 v{t3}, 0x80000000")
        for g_, sh in enumerate((1, -1, 2, -2)):
            p(f"""v_subrev_u32 v{t1}, {sh}, v{t0}
                  v_lshrrev_b32 v{t2}, 4, v{t1}
                  v_mul_u32_u24 v{t2}, 20480, v{t2}
                  v_lshl_add_u32 v{t2}, v{vq}, 8, v{t2}
                  v_cmp_gt_u32 vcc, 2048, v{t1}
                  v_and_b32 v{t1}, 15, v{t1}
                  v_lshl_add_u32 v{t2}, v{t1}, 4, v{t2}
                  v_cndmask_b32 v{va+g_}, v{t3}, v{t2}, vcc""")
        p(f"s_mov_b32 s36, {AB}")
    ACC = V.get(4 * NF * NT, 4)
    acc = lambda f, lt: ACC + 4 * (f * NT + lt)
    vo2 = V.get()
    if kind != "k5":
        vh2 = V.get()
        p(f"""s_lshr_b32 s30, s29, 1
              s_and_b32 s31, s29, 1
              s_mul_i32 s40, s28, 20480
              s_mul_i32 s32, s30, 5120
              s_add_u32 s40, s40, s32
              s_mul_i32 s32, s31, 3072
              s_add_u32 s41, s40, s32
              s_lshl_b32 s32, s31, 9
              s_add_u32 s42, s40, s32
              s_add_u32 s42, s42, 2048
              v_lshrrev_b32 v{t0}, 1, v{vq}
              v_lshl_add_u32 v{t0}, v{t0}, 4, v{vc}
              v_lshlrev_b32 v{vo2}, 4, v{t0}
              v_and_b32 v{t1}, 1, v{vq}
              v_lshl_add_u32 v{vh2}, v{t1}, 3, v{vo2}""")
    srd(p, 24, 10, WS_END)
    RES = V.get(24, 4)
    def resload(base, dst):
        p(f"s_add_u32 s32, s41, {base}\ns_add_u32 s33, s42, {base}")
        p(f"buffer_load_dwordx4 {vr(dst,4)}, v{vl16}, s[24:27], s32 offen")
        p(f"buffer_load_dwordx4 {vr(dst+4,4)}, v{vl16}, s[24:27], s32 offen offset:1024")
        p(f"buffer_load_dwordx2 {vr(dst+8,2)}, v{vh2}, s[24:27], s33 offen")
    st = V.get(2, 2)
    if kind == "k4":
        resload(HB, RES)
        p(f"""s_lshl_b32 s32, s28, 7
              s_add_u32 s32, s32, {ST1}
              v_lshlrev_b32 v{t0}, 3, v{vc}
              buffer_load_dwordx2 {vr(st,2)}, v{t0}, s[24:27], s32 offen""")
    if kind == "k6":
        resload(HB, RES); resload(X1B, RES + 12)
    def issue(pr, c):
        slot = c % SLOTS
        pr(f"s_add_u32 m0, s35, {slot*CH}")
        for i in range(PW):
            if i == 4:
                pr(f"s_add_u32 m0, s35, {slot*CH+4096}\ns_add_u32 s37, s34, 4096")
            pr(f"buffer_load_dwordx4 v{vl16}, s[24:27], {'s37' if i >= 4 else 's34'} offen offset:{(i%4)*1024} lds", tag=f"w{c}")
        pr(f"s_add_u32 s34, s34, {CH}")
        for lt in range(NT):
            if lt:
                pr(f"s_add_u32 s37, s36, {KS*1024}")
            for kk in range(CK):
                ks = c * CK + kk
                vaddr = va + ks // 5 if va is not None else vl16
                pr(f"buffer_load_dwordx4 {vr(4*(ks*NT+lt),4,'a')}, v{vaddr}, s[24:27], {'s37' if lt else 's36'} offen offset:{kk*1024}")
        pr("s_add_u32 s36, s36, 4096")
    for c in range(AHEAD):
        issue(p, c)
    rr = V.get(4, 2); mr = V.get(4, 2); vk0 = V.get(2, 2)
    CSV = RES
    pre = Prog()
    if kind == "k4":
        unpack_pairs(pre, RES, ACC, 1, 0)
        pre(f"v_mul_f32 v{mr}, v{st}, v{st+1}\nv_mov_b32 v{rr}, v{st+1}")
        for f in range(5):
            for h in (0, 2):
                x = vr(acc(f, 0) + h, 2)
                pre(f"v_pk_fma_f32 {x}, {x}, {vr(rr,2)}, {vr(mr,2)} op_sel_hi:[1,0,0] neg_lo:[0,0,1] neg_hi:[0,0,1]")
    WR_N = 16
    WR = V.get(4 * WR_N, 4)
    if kind == "k6":
        srd(pre, 12, 4, S * D * 2)
        unpack_pairs(pre, RES, ACC, 1, 0)
        unpack_pairs(pre, RES + 12, WR, 1, 0)
        for k in range(10):
            pre(f"v_pk_add_f32 {vr(ACC+2*k,2)}, {vr(ACC+2*k,2)}, {vr(WR+2*k,2)}")
    p.extend(pre)
    side = Prog()
    if kind == "k5":
        SL = V.get(8)
        side(f"""s_mul_i32 s32, s29, 384
                 s_add_u32 s32, s32, {CS + 40*64}
                 v_lshlrev_b32 v{t0}, 4, v{vq}""")
        for f in range(6):
            side(f"buffer_load_dwordx4 {vr(CSV+4*f,4)}, v{t0}, s[24:27], s32 offen offset:{64*f}")
        side(f"""v_lshrrev_b32 v{t0}, 1, v{vq}
                 v_lshlrev_b32 v{t0}, 16, v{t0}
                 v_and_b32 v{t1}, 1, v{vq}
                 v_lshl_add_u32 v{t0}, v{t1}, 6, v{t0}
                 v_lshl_add_u32 v{t0}, v{vc}, 2, v{t0}
                 s_lshl_b32 s32, s28, 7
                 s_add_u32 s32, s32, {ST3}""")
        for jj in range(4):
            for lt in range(2):
                side(f"buffer_load_dword v{SL+4*lt+jj}, v{t0}, s[24:27], s32 offen offset:{128*lt}")
            if jj < 3:
                side("s_add_u32 s32, s32, 16384")
    side2 = Prog()
    if kind == "k5":
        for lt in range(2):
            a = SL + 4 * lt
            side2(f"v_add_f32 v{a}, v{a}, v{a+1}\nv_add_f32 v{a+2}, v{a+2}, v{a+3}\nv_add_f32 v{a}, v{a}, v{a+2}")
        side2(f"""v_permlane32_swap_b32 v{SL}, v{SL+4}
                  v_add_f32 v{SL}, v{SL}, v{SL+4}
                  v_mov_b32 v{SL+1}, v{SL}
                  v_permlane16_swap_b32 v{SL}, v{SL+1}
                  v_mul_f32 v{SL}, {f32(1/640)}, v{SL}
                  v_mul_f32 v{SL+1}, {f32(1/640)}, v{SL+1}
                  v_fma_f32 v{SL+1}, -v{SL}, v{SL}, v{SL+1}
                  v_max_f32 v{SL+1}, 0, v{SL+1}
                  v_add_f32 v{SL+1}, {f32(1e-5)}, v{SL+1}
                  v_rsq_f32 v{rr}, v{SL+1}
                  v_mul_f32 v{mr}, v{rr}, v{SL}
                  v_mov_b32 v{rr+2}, v{rr}
                  v_mov_b32 v{mr+2}, v{mr}
                  v_permlane32_swap_b32 v{rr}, v{rr+2}
                  v_permlane32_swap_b32 v{mr}, v{mr+2}
                  v_mov_b32 v{vk0}, {f32(GK0)}
                  v_mov_b32 v{vk0+1}, {f32(GK0)}
                  s_mov_b32 s66, {f32(GK1)}
                  s_mov_b32 s67, {f32(GK1)}""")
    LAG = 10
    total = KS * NF
    def mf(pr, n):
        ks, f = divmod(n, NF)
        for lt in range(NT):
            a_ = vr(acc(f, lt), 4)
            first = (ks == 0 and kind == "k5")
            pr(f"{MF} {a_}, {vr(WR+4*(n%WR_N),4)}, {vr(4*(ks*NT+lt),4,'a')}, {0 if first else a_}")
    for c in range(NCH):
        p.wait_tag(f"w{c}")
        p("s_barrier")
        r = Prog()
        nxt = c + AHEAD
        can = nxt < NCH and (nxt < SLOTS or nxt - SLOTS <= c - 2)
        assert can or nxt >= NCH
        if can:
            issue(r, nxt)
        if c == NCH - AHEAD and kind == "k5":
            r.extend(side)
        if c == NCH - 1:
            r.extend(side2)
        for i in range(CFR):
            n = c * CFR + i
            off = (c % SLOTS) * CH + i * 1024
            if n >= LAG:
                mf(r, n - LAG)
            r(f"ds_read_b128 {vr(WR+4*(n%WR_N),4)}, v{vb[off>>16]} offset:{off & 65535}")
        if c < NCH - 1:
            p.extend(schedule(r, f"{name} c{c}"))
    e = r
    for n in range(total - LAG, total):
        mf(e, n)
    O = V.get(12, 4)
    if kind == "k5":
        GT = [V.get(4, 2) for _ in range(3)]
        CT = V.get(4, 2)
        O2 = V.get(12, 4)
        e(f"""s_mul_i32 s40, s28, {48*1024}
              s_mul_i32 s32, s29, 3072
              s_add_u32 s40, s40, s32
              s_add_u32 s40, s40, {UB}
              s_add_u32 s41, s40, {48*1024}""")
        k = 0
        for pr_ in range(3):
            for lt in range(2):
                for f in (2*pr_, 2*pr_+1):
                    x = acc(f, lt)
                    for h in (0, 2):
                        e(f"v_pk_mul_f32 {vr(CT+h,2)}, {vr(CSV+4*f+h,2)}, {vr(mr+2*lt,2)} op_sel_hi:[1,0]")
                        e(f"v_pk_fma_f32 {vr(x+h,2)}, {vr(x+h,2)}, {vr(rr+2*lt,2)}, {vr(CT+h,2)} op_sel_hi:[1,0,1] neg_lo:[0,0,1] neg_hi:[0,0,1]")
                    gelu4(e, x, GT[k % 3], vk0, 66); k += 1
                o = (O2 if lt else O) + 4 * pr_
                for r_ in range(4):
                    e(f"v_cvt_pk_bf16_f32 v{o+r_}, v{acc(2*pr_,lt)+r_}, v{acc(2*pr_+1,lt)+r_}")
                e(f"buffer_store_dwordx4 {vr(o,4)}, v{vl16}, s[24:27], s{40+lt} offen offset:{1024*pr_} sc1")
        p.extend(schedule(e, f"{name} epi"))
    else:
        for pr_ in range(2):
            for r_ in range(4):
                e(f"v_cvt_pk_bf16_f32 v{O+4*pr_+r_}, v{acc(2*pr_,0)+r_}, v{acc(2*pr_+1,0)+r_}")
        x = acc(4, 0)
        e(f"""v_cvt_pk_bf16_f32 v{O+8}, v{x}, v{x+1}
              v_cvt_pk_bf16_f32 v{O+10}, v{x}, v{x+1}
              v_cvt_pk_bf16_f32 v{O+9}, v{x+2}, v{x+3}
              v_cvt_pk_bf16_f32 v{O+11}, v{x+2}, v{x+3}
              s_mov_b32 s54, 0x0000ffff
              s_mov_b32 s55, 0x0000ffff""")
        if kind == "k4":
            e(f"""s_add_u32 s41, s41, {X1B}
                  s_add_u32 s42, s42, {X1B}
                  s_mov_b32 s38, 0x3f803f80
                  v_mov_b32 v{t0}, 0
                  v_mov_b32 v{t1}, 0""")
            for pr_ in range(2):
                e(f"buffer_store_dwordx4 {vr(O+4*pr_,4)}, v{vl16}, s[24:27], s41 offen offset:{1024*pr_} sc1")
            for k in range(10):
                e(f"v_dot2c_f32_bf16 v{t0}, s38, v{O+k}\nv_dot2c_f32_bf16 v{t1}, v{O+k}, v{O+k}")
            e(f"""v_permlane16_swap_b32 v{O+8}, v{O+10}
                  v_permlane16_swap_b32 v{O+9}, v{O+11}
                  v_permlane16_swap_b32 v{t0}, v{t1}
                  v_add_f32 v{t0}, v{t0}, v{t1}
                  v_mov_b32 v{t1}, v{t0}
                  v_permlane32_swap_b32 v{t0}, v{t1}
                  v_add_f32 v{t0}, v{t0}, v{t1}
                  v_lshrrev_b32 v{t2}, 2, v{vl16}
                  s_lshl_b32 s32, s29, 14
                  s_lshl_b32 s33, s28, 7
                  s_add_u32 s32, s32, s33
                  s_add_u32 s32, s32, {ST3}""")
            p.extend(schedule(e, f"{name} epi"))
            p(f"""s_mov_b64 exec, s[54:55]
                  buffer_store_dwordx4 {vr(O+8,4)}, v{vo2}, s[24:27], s42 offen sc1
                  s_mov_b32 exec_lo, -1
                  s_mov_b32 exec_hi, 0
                  buffer_store_dword v{t0}, v{t2}, s[24:27], s32 offen sc1""")
        else:
            e(f"""v_mul_u32_u24 v{t0}, 1280, v{vc}
                  v_lshl_add_u32 v{t1}, v{vq}, 4, v{t0}
                  v_lshl_add_u32 v{t2}, v{vq}, 3, v{t0}
                  s_mul_i32 s40, s28, {16*1280}
                  s_mul_i32 s32, s30, 320
                  s_add_u32 s40, s40, s32
                  s_mul_i32 s32, s31, 192
                  s_add_u32 s41, s40, s32
                  s_lshl_b32 s32, s31, 5
                  s_add_u32 s42, s40, s32""")
            for pr_ in range(2):
                e(f"buffer_store_dwordx4 {vr(O+4*pr_,4)}, v{t1}, s[12:15], s41 offen offset:{64*pr_}")
            e(f"""v_permlane16_swap_b32 v{O+8}, v{O+10}
                  v_permlane16_swap_b32 v{O+9}, v{O+11}""")
            p.extend(schedule(e, f"{name} epi"))
            p(f"""s_mov_b64 exec, s[54:55]
                  buffer_store_dwordx4 {vr(O+8,4)}, v{t2}, s[12:15], s42 offen offset:128""")
    p(f"{END}:")
    return [head, p], V.hi, 4 * KS * NT, SLOTS * CH
```

```python
from dsl import *
from layout import *
import struct
def f32(x):
    return "0x%08x" % struct.unpack("<I", struct.pack("<f", x))[0]

def srd(p, d, lo, nbytes):
    p(f"""s_mov_b32 s{d}, s{lo}
          s_mov_b32 s{d+1}, s{lo+1}
          s_mov_b32 s{d+2}, {nbytes}
          s_mov_b32 s{d+3}, 0x20000""")

LROW = 2816

def k1():
    head = Prog()
    head("""s_cmp_ge_u32 s2, 512
            s_cbranch_scc1 K1_END
            s_cmp_ge_u32 s2, 256
            s_cbranch_scc1 K1_RELAYOUT""")
    p = Prog()
    V = Alloc(1, 256)
    p("""s_load_dwordx4 s[4:7], s[0:1], 0
         s_load_dwordx2 s[8:9], s[0:1], 16
         s_load_dwordx2 s[10:11], s[0:1], 80""")
    vc, vq, vl, vt = V.get(), V.get(), V.get(), V.get()
    vxo, vwo = V.get(), V.get()
    p(f"""v_and_b32 v{vc}, 15, v0
          v_bfe_u32 v{vq}, v0, 4, 2
          v_and_b32 v{vl}, 63, v0
          v_lshrrev_b32 v{vt}, 6, v0
          v_readfirstlane_b32 s3, v{vt}
          v_mul_u32_u24 v{vxo}, 320, v{vq}
          v_lshl_add_u32 v{vxo}, v{vc}, 2, v{vxo}
          v_lshlrev_b32 v{vwo}, 1, v{vl}
          s_and_b32 s28, s2, 7
          s_lshr_b32 s29, s2, 3
          s_lshl_b32 s28, s28, 3
          s_lshl_b32 s30, s3, 1
          s_add_u32 s28, s28, s30
          s_lshl_b32 s28, s28, 5
          s_add_u32 s28, s28, s29
          s_mul_i32 s28, s28, 1280
          s_add_u32 s29, s28, {32*1280}
          s_lshr_b32 s31, s2, 2
          s_and_b32 s32, s2, 3
          s_lshl_b32 s32, s32, 3
          s_add_u32 s32, s32, s30
          s_lshl_b32 s32, s32, 6
          s_add_u32 s31, s31, s32
          s_mul_i32 s31, s31, 642
          s_add_u32 s31, s31, 2
          s_add_u32 s32, s31, {64*642}""")
    srd(p, 12, 4, S * D * 2)
    L = [V.get(5), V.get(5)]
    for rho in range(2):
        for j in range(5):
            p(f"buffer_load_dword v{L[rho]+j}, v{vxo}, s[12:15], s{28+rho} offen offset:{64*j}")
    srd(p, 16, 6, S * 321 * 2)
    srd(p, 20, 8, S * 321 * 2)
    WR = [V.get(5), V.get(5)]; WI = [V.get(5), V.get(5)]
    for rho in range(2):
        for j in range(5):
            p(f"buffer_load_ushort v{WR[rho]+j}, v{vwo}, s[16:19], s{31+rho} offen offset:{128*j}")
            p(f"buffer_load_ushort v{WI[rho]+j}, v{vwo}, s[20:23], s{31+rho} offen offset:{128*j}")
    srd(p, 24, 10, WS_END)
    fc, f5q, f8q, t0, t1, t2, t3 = (V.get() for _ in range(7))
    B1re, B1im = V.get(4, 4), V.get(4, 4)
    twc, tws = V.get(8, 2), V.get(8, 2)
    A2P, A2Q = V.get(8, 4), V.get(8, 4)
    tc, ts = V.get(5), V.get(5)
    p(f"""v_cvt_f32_u32 v{fc}, v{vc}
          v_cvt_f32_u32 v{f8q}, v{vq}
          v_mul_f32 v{f5q}, 0.25, v{f8q}
          v_mul_f32 v{f8q}, {f32(8.0)}, v{f8q}
          v_mul_f32 v{f5q}, v{f5q}, v{fc}
          v_mul_f32 v{f8q}, v{f8q}, v{fc}""".replace("0.25", f32(0.25)))
    for j in range(5):
        p(f"""v_fmamk_f32 v{t0}, v{fc}, {f32(j/20)}, v{f5q}
              v_cos_f32 v{tc+j}, v{t0}
              v_sin_f32 v{ts+j}, v{t0}""")
    p(f"""v_cvt_pk_bf16_f32 v{B1re}, v{tc}, v{tc+1}
          v_cvt_pk_bf16_f32 v{B1re+1}, v{tc+2}, v{tc+3}
          v_cvt_pk_bf16_f32 v{B1re+2}, v{tc+4}, 0
          v_mov_b32 v{B1re+3}, 0
          v_cvt_pk_bf16_f32 v{B1im}, -v{ts}, -v{ts+1}
          v_cvt_pk_bf16_f32 v{B1im+1}, -v{ts+2}, -v{ts+3}
          v_cvt_pk_bf16_f32 v{B1im+2}, -v{ts+4}, 0
          v_mov_b32 v{B1im+3}, 0""")
    for t in range(2):
        for r in range(4):
            m = 2 * r + t
            p(f"""v_fmamk_f32 v{t0}, v{fc}, {f32(float(m))}, v{f8q}
                  v_mul_f32 v{t1}, {f32(1/640)}, v{t0}
                  v_mul_f32 v{t0}, {f32(1/32)}, v{t0}
                  v_cos_f32 v{twc+4*t+r}, v{t1}
                  v_sin_f32 v{tws+4*t+r}, v{t1}
                  v_cos_f32 v{t2}, v{t0}
                  v_sin_f32 v{t3}, v{t0}
                  v_cvt_pk_bf16_f32 v{A2P+4*t+r}, v{t2}, v{t3}
                  v_cvt_pk_bf16_f32 v{A2Q+4*t+r}, -v{t3}, v{t2}""")
    va0, va1, vaw, vrd, vgo, vis0 = (V.get() for _ in range(6))
    p(f"""s_mul_i32 s33, s3, {2*LROW}
          s_lshr_b32 s34, s3, 1
          s_lshl_b32 s34, s34, 6
          s_add_u32 s33, s33, s34
          v_add_u32 v{va0}, s33, v{vxo}
          s_add_u32 s34, s33, {260*4}
          v_sub_u32 v{va1}, s34, v{vxo}
          s_add_u32 s34, s33, {321*4}
          v_lshl_add_u32 v{vaw}, v{vl}, 2, s34
          v_and_b32 v{t0}, 1, v0
          v_mul_u32_u24 v{vrd}, {4*LROW+64}, v{t0}
          v_lshrrev_b32 v{t0}, 1, v0
          v_lshl_add_u32 v{vrd}, v{t0}, 2, v{vrd}
          v_add_u32 v{vrd}, 4, v{vrd}
          v_lshlrev_b32 v{vgo}, 4, v0
          s_mul_i32 s35, s2, 20480
          s_mov_b32 s36, 0x05040100
          s_mov_b32 s37, 0x07060302
          s_mov_b32 s38, 0x3f803f80
          v_cmp_eq_u32 vcc, 0, v{vc}
          v_mov_b32 v{t0}, {f32(-20.0/640)}
          v_cndmask_b32 v{vis0}, 0, v{t0}, vcc""")
    A = [[V.get(4, 4), V.get(4, 4)] for _ in range(2)]
    D1 = [[[V.get(4, 4) for _ in range(2)] for _ in range(2)] for _ in range(2)]
    s1 = [V.get(), V.get()]; s2 = [V.get(), V.get()]
    for rho in range(2):
        p(f"v_mov_b32 v{A[rho][0]+3}, 0\nv_mov_b32 v{A[rho][1]+3}, 0\nv_mov_b32 v{s1[rho]}, 0\nv_mov_b32 v{s2[rho]}, 0")
    for rho in range(2):
        l = L[rho]
        p(f"""v_perm_b32 v{A[rho][0]}, v{l+1}, v{l}, s36
              v_perm_b32 v{A[rho][0]+1}, v{l+3}, v{l+2}, s36
              v_and_b32 v{A[rho][0]+2}, 0xffff, v{l+4}
              v_perm_b32 v{A[rho][1]}, v{l+1}, v{l}, s37
              v_perm_b32 v{A[rho][1]+1}, v{l+3}, v{l+2}, s37
              v_lshrrev_b32 v{A[rho][1]+2}, 16, v{l+4}""")
    ms, st = Prog(), Prog()
    for rho in range(2):
        for t in range(2):
            ms(f"v_mfma_f32_16x16x32_bf16 {vr(D1[rho][t][0],4)}, {vr(A[rho][t],4)}, {vr(B1re,4)}, 0")
            ms(f"v_mfma_f32_16x16x32_bf16 {vr(D1[rho][t][1],4)}, {vr(A[rho][t],4)}, {vr(B1im,4)}, 0")
    for j in range(5):
        for rho in range(2):
            st(f"v_dot2c_f32_bf16 v{s1[rho]}, s38, v{L[rho]+j}")
            st(f"v_dot2c_f32_bf16 v{s2[rho]}, v{L[rho]+j}, v{L[rho]+j}")
    p.extend(interleave(ms, st))
    p(f"""v_permlane16_swap_b32 v{s1[0]}, v{s2[0]}
          v_permlane16_swap_b32 v{s1[1]}, v{s2[1]}
          v_add_f32 v{s1[0]}, v{s1[0]}, v{s2[0]}
          v_add_f32 v{s1[1]}, v{s1[1]}, v{s2[1]}
          v_permlane32_swap_b32 v{s1[0]}, v{s1[1]}
          v_add_f32 v{s1[0]}, v{s1[0]}, v{s1[1]}""")
    fil = Prog()
    for rho in range(2):
        for j in range(5):
            fil(f"v_lshl_or_b32 v{WR[rho]+j}, v{WI[rho]+j}, 16, v{WR[rho]+j}")
    red = Prog()
    for sh in (8, 4, 2, 1):
        red(f"v_add_f32_dpp v{s1[0]}, v{s1[0]}, v{s1[0]} row_ror:{sh} row_mask:0xf bank_mask:0xf")
    p.extend(red)
    p(f"""v_readlane_b32 s40, v{s1[0]}, 0
          v_readlane_b32 s41, v{s1[0]}, 16
          v_readlane_b32 s42, v{s1[0]}, 32
          v_readlane_b32 s43, v{s1[0]}, 48""")
    nmu = [V.get(2, 2), V.get(2, 2)]; rs = [V.get(2, 2), V.get(2, 2)]
    for rho in range(2):
        p(f"v_mul_f32 v{nmu[rho]}, s{40+2*rho}, v{vis0}")
    for rho in range(2):
        p(f"""v_mov_b32 v{t0+rho}, {f32(1/640)}
              v_mul_f32 v{t2+rho}, s{40+2*rho}, v{t0+rho}
              v_mul_f32 v{t0+rho}, s{41+2*rho}, v{t0+rho}
              v_fma_f32 v{t0+rho}, -v{t2+rho}, v{t2+rho}, v{t0+rho}
              v_max_f32 v{t0+rho}, 0, v{t0+rho}
              v_add_f32 v{t0+rho}, {f32(1e-5)}, v{t0+rho}
              v_rsq_f32 v{rs[rho]}, v{t0+rho}""")
    B2 = [[V.get(4, 4), V.get(4, 4)] for _ in range(2)]
    tr, ti = V.get(4, 2), V.get(4, 2)
    U = A
    Uim = [[V.get(4, 4), V.get(4, 4)] for _ in range(2)]
    for rho in range(2):
        for t in range(2):
            a, b = D1[rho][t]
            for h in range(2):
                c_, s_ = twc + 4*t + 2*h, tws + 4*t + 2*h
                p(f"""v_pk_fma_f32 {vr(tr+2*h,2)}, {vr(b+2*h,2)}, {vr(s_,2)}, {vr(nmu[rho],2)} op_sel_hi:[1,1,0]
                      v_pk_mul_f32 {vr(ti+2*h,2)}, {vr(b+2*h,2)}, {vr(c_,2)}
                      v_pk_fma_f32 {vr(tr+2*h,2)}, {vr(a+2*h,2)}, {vr(c_,2)}, {vr(tr+2*h,2)}
                      v_pk_fma_f32 {vr(ti+2*h,2)}, {vr(a+2*h,2)}, {vr(s_,2)}, {vr(ti+2*h,2)} neg_lo:[1,0,0] neg_hi:[1,0,0]""")
            for r in range(4):
                p(f"v_cvt_pk_bf16_f32 v{B2[rho][t]+r}, v{tr+r}, v{ti+r}")
        for t in range(2):
            p(f"v_mfma_f32_16x16x32_bf16 {vr(U[rho][t],4)}, {vr(A2P+4*t,4)}, {vr(B2[rho][t],4)}, 0")
            p(f"v_mfma_f32_16x16x32_bf16 {vr(Uim[rho][t],4)}, {vr(A2Q+4*t,4)}, {vr(B2[rho][t],4)}, 0")
    p.extend(fil)
    for rho in range(2):
        for j in range(5):
            p(f"ds_write_b32 v{vaw}, v{WR[rho]+j} offset:{rho*LROW + 256*j}")
    p("s_mov_b32 s44, 0x07ff07ff\ns_mov_b32 s45, 0x07ff07ff")
    for rho in range(2):
        o = D1[rho]
        for part, uu in ((0, U[rho]), (1, Uim[rho])):
            for h in range(2):
                p(f"""v_pk_mul_f32 {vr(uu[0]+2*h,2)}, {vr(uu[0]+2*h,2)}, {vr(rs[rho],2)} op_sel_hi:[1,0]
                      v_pk_fma_f32 {vr(o[0][part]+2*h,2)}, {vr(uu[1]+2*h,2)}, {vr(rs[rho],2)}, {vr(uu[0]+2*h,2)} op_sel_hi:[1,0,1]
                      v_pk_fma_f32 {vr(o[1][part]+2*h,2)}, {vr(uu[1]+2*h,2)}, {vr(rs[rho],2)}, {vr(uu[0]+2*h,2)} op_sel_hi:[1,0,1] neg_lo:[1,0,0] neg_hi:[1,0,0]""")
        for r in range(4):
            p(f"v_cvt_pk_bf16_f32 v{B2[rho][0]+r}, v{o[0][0]+r}, v{o[0][1]+r}")
            p(f"v_cvt_pk_bf16_f32 v{B2[rho][1]+r}, v{o[1][0]+r}, -v{o[1][1]+r}")
    p("s_mov_b64 exec, s[44:45]")
    for rho in range(2):
        for r in range(4):
            p(f"ds_write_b32 v{va0}, v{B2[rho][0]+r} offset:{rho*LROW + 80*r}")
            p(f"ds_write_b32 v{va1}, v{B2[rho][1]+r} offset:{rho*LROW + 80*(3-r)}")
    p("s_mov_b64 exec, -1\ns_waitcnt lgkmcnt(0)\ns_barrier")
    O = V.get(20, 4)
    for j in range(5):
        p(f"ds_read2st64_b32 {vr(O+4*j,2)}, v{vrd} offset0:{2*j} offset1:{11+2*j}")
        p(f"ds_read2st64_b32 {vr(O+4*j+2,2)}, v{vrd} offset0:{22+2*j} offset1:{33+2*j}")
    for j in range(5):
        p(f"buffer_store_dwordx4 {vr(O+4*j,4)}, v{vgo}, s[24:27], s35 offen sc1")
        if j < 4:
            p("s_add_u32 s35, s35, 4096")
    p("s_endpgm")
    hiA = V.hi

    b = Prog()
    b("""K1_RELAYOUT:
         s_load_dwordx8 s[4:11], s[0:1], 32
         s_load_dwordx2 s[12:13], s[0:1], 80
         v_and_b32 v1, 15, v0
         v_bfe_u32 v2, v0, 4, 2
         v_lshrrev_b32 v3, 6, v0
         v_readfirstlane_b32 s3, v3
         v_and_b32 v3, 63, v0
         v_lshlrev_b32 v3, 4, v3
         s_sub_u32 s14, s2, 256
         s_mov_b32 s36, 0x05040100
         s_mov_b32 s37, 0x07060302
         s_and_b32 s30, s3, 1
         s_lshr_b32 s31, s3, 1
         v_mov_b32 v8, 0x3f803f80
         v_mov_b32 v9, 0x3f803f80
         v_mov_b32 v10, 0x3f803f80
         v_mov_b32 v11, 0x3f803f80
         v_lshlrev_b32 v6, 4, v2
         s_waitcnt lgkmcnt(0)""")
    srd(b, 24, 12, WS_END)
    b("""s_cmp_ge_u32 s14, 176
         s_cbranch_scc1 K1_RL3""")
    def pair(pr, base, offs, dst):
        for jr in range(8):
            pr(f"buffer_load_dword v{base+jr}, v4, s[16:19], s{40+jr} offen offset:{offs}")
    def pair_out(pr, base, dst):
        for k in range(4):
            pr(f"v_perm_b32 v{dst+k}, v{base+2*k+1}, v{base+2*k}, s36")
        for k in range(4):
            pr(f"v_perm_b32 v{dst+4+k}, v{base+2*k+1}, v{base+2*k}, s37")
    def stores(pr, nf, cs_label):
        for f in range(nf):
            if f == 4:
                pr("s_add_u32 s35, s35, 4096")
            pr(f"buffer_store_dwordx4 {vr(40+4*f,4)}, v3, s[24:27], s35 offen offset:{(f%4)*1024} sc1")
    def csum(pr, nf):
        for f in range(nf):
            pr(f"v_mfma_f32_16x16x32_bf16 {vr(64+4*f,4)}, {vr(40+4*f,4)}, v[8:11], 0")
        pr("s_mov_b32 s44, 0x00010001\ns_mov_b32 s45, 0x00010001\ns_mov_b64 exec, s[44:45]")
        for f in range(nf):
            pr(f"buffer_store_dwordx4 {vr(64+4*f,4)}, v6, s[24:27], s34 offen offset:{64*f} sc1")
    a = Prog()
    a(f"""s_mov_b32 s16, s4
          s_mov_b32 s17, s5
          s_mov_b32 s18, {640*640*2}
          s_mov_b32 s19, 0x20000
          s_mov_b32 s20, {W1P}
          s_mov_b32 s21, 20
          s_mov_b32 s22, s14
          s_cmp_ge_u32 s14, 40
          s_cselect_b32 s16, s6, s16
          s_cselect_b32 s17, s7, s17
          s_cselect_b32 s20, {W2P}, s20
          s_cselect_b32 s23, 40, 0
          s_cmp_ge_u32 s14, 80
          s_cselect_b32 s16, s10, s16
          s_cselect_b32 s17, s11, s17
          s_cselect_b32 s18, {1536*640*2}, s18
          s_cselect_b32 s20, {W4P}, s20
          s_cselect_b32 s21, 48, s21
          s_cselect_b32 s23, 80, s23
          s_sub_u32 s22, s22, s23
          s_and_b32 s28, s22, 3
          s_lshr_b32 s29, s22, 2
          s_lshl_b32 s29, s29, 1
          s_add_u32 s29, s29, s31
          v_mul_u32_u24 v5, {8*1280}, v2
          v_lshl_add_u32 v4, v1, 2, v5
          v_lshl_add_u32 v5, v1, 1, v5
          s_mul_i32 s40, s29, {32*1280}
          s_mul_i32 s32, s28, 320
          s_add_u32 s40, s40, s32
          s_lshl_b32 s33, s30, 5
          s_add_u32 s33, s33, 128
          v_add_u32 v5, s33, v5
          s_mul_i32 s33, s30, 192
          v_add_u32 v4, s33, v4""")
    for jr in range(1, 8):
        a(f"s_add_u32 s{40+jr}, s{39+jr}, 1280")
    pair(a, 16, 0, 40); pair(a, 24, 64, 48)
    for jr in range(8):
        a(f"buffer_load_ushort v{32+jr}, v5, s[16:19], s{40+jr} offen")
    a(f"""s_lshl_b32 s32, s28, 1
          s_add_u32 s32, s32, s30
          s_mul_i32 s35, s32, s21
          s_add_u32 s35, s35, s29
          s_mul_i32 s35, s35, 5120
          s_add_u32 s35, s35, s20
          s_mul_i32 s34, s29, 8704
          s_mul_i32 s33, s32, 320
          s_add_u32 s34, s34, s33
          s_add_u32 s34, s34, {CSP}""")
    pair_out(a, 16, 40); pair_out(a, 24, 48)
    for k in range(4):
        a(f"v_lshl_or_b32 v{56+k}, v{32+2*k+1}, 16, v{32+2*k}")
    stores(a, 5, None)
    a("s_cmp_ge_u32 s14, 40\ns_cbranch_scc1 K1_END")
    csum(a, 5)
    a("s_endpgm")
    c = Prog()
    c(f"""K1_RL3:
          s_mov_b32 s16, s8
          s_mov_b32 s17, s9
          s_mov_b32 s18, {640*1536*2}
          s_mov_b32 s19, 0x20000
          s_sub_u32 s22, s14, 176
          s_and_b32 s28, s22, 7
          s_lshr_b32 s29, s22, 3
          s_lshl_b32 s29, s29, 1
          s_add_u32 s29, s29, s31
          v_mul_u32_u24 v5, {8*3072}, v2
          v_lshl_add_u32 v4, v1, 2, v5
          s_lshl_b32 s32, s28, 1
          s_add_u32 s32, s32, s30
          s_mul_i32 s40, s29, {32*3072}
          s_mul_i32 s33, s32, 192
          s_add_u32 s40, s40, s33""")
    for jr in range(1, 8):
        c(f"s_add_u32 s{40+jr}, s{39+jr}, 3072")
    pair(c, 16, 0, 40); pair(c, 24, 64, 48); pair(c, 32, 128, 56)
    c(f"""s_mul_i32 s35, s32, 20
          s_add_u32 s35, s35, s29
          s_mul_i32 s35, s35, 6144
          s_add_u32 s35, s35, {W3P}
          s_mul_i32 s34, s29, 8704
          s_mul_i32 s33, s32, 384
          s_add_u32 s34, s34, s33
          s_add_u32 s34, s34, {CSP + 40*64}""")
    pair_out(c, 16, 40); pair_out(c, 24, 48); pair_out(c, 32, 56)
    stores(c, 6, None)
    csum(c, 6)
    c("K1_END:")
    return [head, p, b, a, c], max(hiA, 88), 8 * LROW
```

```python
from dsl import *
from layout import *
from k1 import f32, srd

MF = "v_mfma_f32_16x16x32_bf16"

def cmul(p, a, b, c_, s_, tr, ti, sign):
    n1 = "neg_lo:[1,0,0] neg_hi:[1,0,0]"
    for h in (0, 2):
        p(f"v_pk_mul_f32 {vr(tr+h,2)}, {vr(a+h,2)}, {vr(c_+h,2)}")
        p(f"v_pk_mul_f32 {vr(ti+h,2)}, {vr(b+h,2)}, {vr(c_+h,2)}")
        p(f"v_pk_fma_f32 {vr(tr+h,2)}, {vr(b+h,2)}, {vr(s_+h,2)}, {vr(tr+h,2)} {n1 if sign > 0 else ''}")
        p(f"v_pk_fma_f32 {vr(ti+h,2)}, {vr(a+h,2)}, {vr(s_+h,2)}, {vr(ti+h,2)} {n1 if sign < 0 else ''}")

def k2():
    LX, LW, LE = 0, 16384, 32768
    head = Prog()
    head("""s_cmp_ge_u32 s2, 169
            s_cbranch_scc1 K2_END
            s_cmp_ge_u32 s2, 160
            s_cbranch_scc1 K2_CS""")
    p = Prog()
    V = Alloc(1, 256)
    p("s_load_dwordx2 s[10:11], s[0:1], 80")
    vc, vq, vl, t0, t1, t2, t3, vxo, vwo = (V.get() for _ in range(9))
    p(f"""v_and_b32 v{vc}, 15, v0
          v_bfe_u32 v{vq}, v0, 4, 2
          v_and_b32 v{vl}, 63, v0
          v_lshrrev_b32 v{t0}, 6, v0
          v_readfirstlane_b32 s3, v{t0}
          v_and_b32 v{t0}, 3, v0
          v_xor_b32 v{t0}, v{t0}, v{vq}
          v_lshlrev_b32 v{t0}, 4, v{t0}
          v_lshrrev_b32 v{t1}, 2, v{vl}
          s_mov_b32 s28, {16*20480}
          v_mad_u32_u24 v{vxo}, v{t1}, s28, v{t0}
          v_and_b32 v{t1}, 3, v{t1}
          v_lshl_add_u32 v{t1}, v{vq}, 3, v{t1}
          s_mov_b32 s28, {4*20480}
          v_mad_u32_u24 v{vwo}, v{t1}, s28, v{t0}
          s_and_b32 s28, s2, 7
          s_mul_i32 s28, s28, 20
          s_lshr_b32 s29, s2, 3
          s_add_u32 s28, s28, s29
          s_lshl_b32 s29, s28, 6
          s_mul_i32 s30, s3, {4*20480}
          s_add_u32 s30, s30, s29
          s_lshr_b32 s31, s3, 1
          s_and_b32 s32, s3, 1
          s_lshl_b32 s33, s31, 5
          s_lshl_b32 s34, s32, 2
          s_add_u32 s33, s33, s34
          s_mul_i32 s34, s33, {4*20480}
          s_add_u32 s34, s34, s29
          s_add_u32 s34, s34, 10240
          s_lshl_b32 s35, s3, 12""")
    P64, Q64 = V.get(16, 4), V.get(16, 4)
    P32, Q32 = V.get(16, 4), V.get(16, 4)
    fc_, fs_, ic_, is_ = V.get(8, 2), V.get(8, 2), V.get(8, 2), V.get(8, 2)
    fk, fq8, fce, fb = (V.get() for _ in range(4))
    cst = Prog()
    cst(f"""v_lshrrev_b32 v{t0}, 2, v{vc}
            v_and_b32 v{t1}, 3, v{vc}
            v_lshl_add_u32 v{t0}, v{t0}, 3, v{t1}
            v_add_u32 v{t0}, s33, v{t0}
            v_cvt_f32_u32 v{fk}, v{t0}
            v_lshlrev_b32 v{t0}, 3, v{vq}
            v_cvt_f32_u32 v{fq8}, v{t0}
            v_mul_f32 v{fk}, {f32(1/64)}, v{fk}
            v_mul_f32 v{fb}, v{fk}, v{fq8}""")
    for ks in range(4):
        for i in range(4):
            n = 32 * (ks >> 1) + 4 * (ks & 1) + i
            cst(f"""v_fmamk_f32 v{t0}, v{fk}, {f32(float(n))}, v{fb}
                    v_cos_f32 v{t2}, v{t0}
                    v_sin_f32 v{t3}, v{t0}
                    v_cvt_pk_bf16_f32 v{P64+4*ks+i}, v{t2}, v{t3}
                    v_cvt_pk_bf16_f32 v{Q64+4*ks+i}, -v{t3}, v{t2}""")
    cst2 = Prog()
    cst2(f"""v_mul_f32 v{fk}, {f32(1/32)}, v{fk}
             v_mul_f32 v{fb}, {f32(1/32)}, v{fb}""")
    for mt in range(2):
        for r in range(4):
            cst2(f"""v_fmamk_f32 v{t0}, v{fk}, {f32(float(2*r+mt))}, v{fb}
                     v_cos_f32 v{fc_+4*mt+r}, v{t0}
                     v_sin_f32 v{fs_+4*mt+r}, v{t0}""")
    for a in range(2):
        cst2(f"""v_lshl_add_u32 v{t0}, v{vc}, 1, {a}
                 v_cvt_f32_u32 v{fce}, v{t0}
                 v_mul_f32 v{fce}, {f32(1/32)}, v{fce}
                 v_mul_f32 v{fb}, v{fce}, v{fq8}""")
        for b in range(2):
            for r in range(4):
                cst2(f"""v_fmamk_f32 v{t0}, v{fce}, {f32(float(2*r+b))}, v{fb}
                         v_cos_f32 v{t2}, v{t0}
                         v_sin_f32 v{t3}, v{t0}
                         v_cvt_pk_bf16_f32 v{P32+(2*a+b)*4+r}, v{t2}, v{t3}
                         v_cvt_pk_bf16_f32 v{Q32+(2*a+b)*4+r}, -v{t3}, v{t2}""")
        cst2(f"""v_cvt_f32_u32 v{t1}, s33
                 v_add_f32 v{t1}, v{t1}, v{fq8}
                 v_mul_f32 v{fce}, {f32(1/64)}, v{fce}
                 v_mul_f32 v{fb}, v{fce}, v{t1}""")
        for r in range(4):
            cst2(f"""v_fmamk_f32 v{t0}, v{fce}, {f32(float(r))}, v{fb}
                     v_cos_f32 v{ic_+4*a+r}, v{t0}
                     v_sin_f32 v{is_+4*a+r}, v{t0}""")
    p.extend(cst)
    srd(p, 24, 10, WS_END)
    for it in range(4):
        p(f"s_add_u32 m0, s35, {LX + 1024*it}")
        p(f"buffer_load_dwordx4 v{vxo}, s[24:27], s30 offen lds", tag="x")
        if it < 3:
            p("s_add_u32 s30, s30, 20480")
    for it in range(4):
        p(f"s_add_u32 m0, s35, {LW + 1024*it}")
        p(f"buffer_load_dwordx4 v{vwo}, s[24:27], s34 offen lds", tag="w")
        if it < 3:
            p("s_add_u32 s34, s34, 20480")
    p.extend(cst2)
    rd = V.get(4); rdw = V.get(4); vex, vexw, voo = V.get(), V.get(), V.get()
    p(f"v_lshrrev_b32 v{t0}, 2, v{vc}")
    for pc in range(4):
        p(f"""v_xor_b32 v{t1}, {pc}, v{t0}
              v_lshlrev_b32 v{t1}, 4, v{t1}
              v_lshl_add_u32 v{rd+pc}, v{vl}, 6, v{t1}
              v_add_u32 v{rdw+pc}, s35, v{rd+pc}""")
    p(f"""v_lshlrev_b32 v{vex}, 4, v{vl}
          s_lshl_b32 s36, s3, 11
          v_add_u32 v{vexw}, s36, v{vex}
          s_mov_b32 s36, {8*40960}
          v_lshlrev_b32 v{t0}, 3, v{vc}
          v_mad_u32_u24 v{voo}, v{vq}, s36, v{t0}
          s_mul_i32 s40, s33, 40960
          s_lshl_b32 s36, s28, 8
          s_add_u32 s40, s40, s36
          s_add_u32 s40, s40, {YC}
          s_add_u32 s41, s40, 40960
          s_add_u32 s42, s40, {2*40960}
          s_add_u32 s43, s40, {3*40960}""")
    p.wait_tag("x")
    p("s_barrier")
    cols = []
    tr, ti = V.get(4, 2), V.get(4, 2)
    for col in range(2):
        A = V.get(32, 4)
        Dr, Di = V.get(8, 4), V.get(8, 4)
        B = V.get(8, 4)
        Wr, Wi, Wraw = A, A + 8, A + 16
        ld, s1, tw, s2, wm, i1, ti_, ex, i2, outp, wun = (Prog() for _ in range(11))
        for mt in range(2):
            for ks in range(4):
                ld(f"ds_read_b128 {vr(A+(mt*4+ks)*4,4)}, v{rd+col*2+(ks&1)} offset:{LX+(mt*2+(ks>>1))*4096}")
        for ks in range(4):
            for mt in range(2):
                a = vr(A+(mt*4+ks)*4, 4)
                s1(f"{MF} {vr(Dr+4*mt,4)}, {a}, {vr(P64+4*ks,4)}, {vr(Dr+4*mt,4) if ks else 0}")
                s1(f"{MF} {vr(Di+4*mt,4)}, {a}, {vr(Q64+4*ks,4)}, {vr(Di+4*mt,4) if ks else 0}")
        for mt in range(2):
            cmul(tw, Dr+4*mt, Di+4*mt, fc_+4*mt, fs_+4*mt, tr, ti, -1)
            for r in range(4):
                tw(f"v_cvt_pk_bf16_f32 v{B+4*mt+r}, v{tr+r}, v{ti+r}")
        for mt in range(2):
            for m2 in range(2):
                s2(f"{MF} {vr(Dr+4*m2,4)}, {vr(P32+(2*m2+mt)*4,4)}, {vr(B+4*mt,4)}, {vr(Dr+4*m2,4) if mt else 0}")
                s2(f"{MF} {vr(Di+4*m2,4)}, {vr(Q32+(2*m2+mt)*4,4)}, {vr(B+4*mt,4)}, {vr(Di+4*m2,4) if mt else 0}")
        for half in range(2):
            wun(f"ds_read_b128 {vr(Wraw+4*half,4)}, v{rdw+col*2+half} offset:{LW}")
        for m2 in range(2):
            for r in range(4):
                wm(f"v_lshlrev_b32 v{Wr+4*m2+r}, 16, v{Wraw+2*r+m2}")
                wm(f"v_and_b32 v{Wi+4*m2+r}, 0xffff0000, v{Wraw+2*r+m2}")
        for m2 in range(2):
            cmul(wm, Dr+4*m2, Di+4*m2, Wr+4*m2, Wi+4*m2, tr, ti, +1)
            for r in range(4):
                wm(f"v_cvt_pk_bf16_f32 v{B+4*m2+r}, v{ti+r}, v{tr+r}")
        for m2 in range(2):
            for nt in range(2):
                i1(f"{MF} {vr(Dr+4*nt,4)}, {vr(B+4*m2,4)}, {vr(Q32+(2*nt+m2)*4,4)}, {vr(Dr+4*nt,4) if m2 else 0}")
                i1(f"{MF} {vr(Di+4*nt,4)}, {vr(B+4*m2,4)}, {vr(P32+(2*nt+m2)*4,4)}, {vr(Di+4*nt,4) if m2 else 0}")
        for nt in range(2):
            cmul(ti_, Dr+4*nt, Di+4*nt, ic_+4*nt, is_+4*nt, tr, ti, +1)
            for r in range(4):
                ti_(f"v_cvt_pk_bf16_f32 v{B+4*nt+r}, v{ti+r}, v{tr+r}")
            ti_(f"ds_write_b128 v{vexw}, {vr(B+4*nt,4)} offset:{LE+col*8192+nt*1024}")
        for w2 in range(4):
            for nt in range(2):
                ex(f"ds_read_b128 {vr(A+(w2*2+nt)*4,4)}, v{vex} offset:{LE+col*8192+w2*2048+nt*1024}")
        for w2 in range(4):
            for nt in range(2):
                e = vr(A+(w2*2+nt)*4, 4)
                i2(f"{MF} {vr(Dr+4*nt,4)}, {vr(Q64+4*w2,4)}, {e}, {vr(Dr+4*nt,4) if w2 else 0}")
                i2(f"{MF} {vr(Di+4*nt,4)}, {vr(P64+4*w2,4)}, {e}, {vr(Di+4*nt,4) if w2 else 0}")
        for r in range(4):
            outp(f"v_cvt_pk_bf16_f32 v{B+2*r}, v{Dr+r}, v{Di+r}")
            outp(f"v_cvt_pk_bf16_f32 v{B+2*r+1}, v{Dr+4+r}, v{Di+4+r}")
            outp(f"buffer_store_dwordx2 {vr(B+2*r,2)}, v{voo}, s[24:27], s{40+r} offen offset:{128*col} sc1")
        cols.append(dict(ld=ld, s1=s1, tw=tw, s2=s2, wm=wm, i1=i1, ti=ti_, ex=ex, i2=i2, out=outp, wun=wun))
    a, b = cols
    p.extend(a["ld"]); p.extend(b["ld"])
    p.extend(a["s1"])
    p.wait_tag("w")
    p.extend(a["wun"])
    p.extend(interleave(b["s1"], a["tw"]))
    p.extend(b["wun"])
    p.extend(interleave(a["s2"], b["tw"]))
    p.extend(interleave(b["s2"], a["wm"]))
    p.extend(interleave(a["i1"], b["wm"]))
    p.extend(interleave(b["i1"], a["ti"]))
    p.extend(b["ti"])
    p("s_waitcnt lgkmcnt(0)\ns_barrier")
    p.extend(a["ex"]); p.extend(b["ex"])
    p.extend(a["i2"])
    p.extend(interleave(b["i2"], a["out"]))
    p.extend(b["out"])
    p("s_endpgm")
    c = Prog()
    c(f"""K2_CS:
          s_load_dwordx2 s[10:11], s[0:1], 80
          s_sub_u32 s3, s2, 160
          s_lshl_b32 s3, s3, 8
          v_add_u32 v1, s3, v0
          v_lshlrev_b32 v2, 2, v1
          s_mov_b32 s28, {CSP}
          s_mov_b32 s29, {CS}
          s_waitcnt lgkmcnt(0)""")
    srd(c, 24, 10, WS_END)
    c("""v_cmp_gt_u32 vcc, 2176, v1
         s_and_saveexec_b64 s[30:31], vcc
         s_cbranch_execz K2_END""")
    for k in range(20):
        c(f"buffer_load_dword v{4+k}, v2, s[24:27], s28 offen")
        c("s_add_u32 s28, s28, 8704")
    for k in range(1, 20):
        c(f"v_add_f32 v4, v4, v{4+k}")
    c("buffer_store_dword v4, v2, s[24:27], s29 offen sc1")
    c("K2_END:")
    return [head, p, c], V.hi, 49152
```

```python
from dsl import *
from layout import *
from k1 import f32, srd
from k2 import cmul, MF

GK0 = -2.0 * 0.7978845608028654 * 1.4426950408889634
GK1 = GK0 * 0.044715

def gelu4(p, x, t, vk0, sk1):
    for h in (0, 2):
        p(f"v_pk_mul_f32 {vr(t+h,2)}, {vr(x+h,2)}, {vr(x+h,2)}")
        p(f"v_pk_fma_f32 {vr(t+h,2)}, {vr(t+h,2)}, s[{sk1}:{sk1+1}], {vr(vk0,2)}")
        p(f"v_pk_mul_f32 {vr(t+h,2)}, {vr(t+h,2)}, {vr(x+h,2)}")
    for r in range(4):
        p(f"v_exp_f32 v{t+r}, v{t+r}")
    for h in (0, 2):
        p(f"v_pk_add_f32 {vr(t+h,2)}, {vr(t+h,2)}, 1.0 op_sel_hi:[1,0]")
    for r in range(4):
        p(f"v_rcp_f32 v{t+r}, v{t+r}")
    for h in (0, 2):
        p(f"v_pk_mul_f32 {vr(x+h,2)}, {vr(x+h,2)}, {vr(t+h,2)}")

def k3():
    LY, LA, LR, LS = 0, 41216, 0, 20480
    head = Prog()
    head("s_cmp_ge_u32 s2, 256\ns_cbranch_scc1 K3_END")
    p = Prog()
    V = Alloc(1, 256)
    AW, AX = 0, 200
    p("""s_load_dwordx2 s[4:5], s[0:1], 0
         s_load_dwordx2 s[10:11], s[0:1], 80""")
    vc, vq, vl, t0, t1, t2, t3, vyo, vx1, vx2, vl16 = (V.get() for _ in range(11))
    p(f"""v_and_b32 v{vc}, 15, v0
          v_bfe_u32 v{vq}, v0, 4, 2
          v_and_b32 v{vl}, 63, v0
          v_lshrrev_b32 v{t0}, 6, v0
          v_readfirstlane_b32 s3, v{t0}
          v_lshlrev_b32 v{vl16}, 4, v{vl}
          s_and_b32 s28, s2, 7
          s_lshl_b32 s28, s28, 3
          s_lshr_b32 s29, s2, 5
          s_add_u32 s28, s28, s29
          s_lshr_b32 s29, s2, 3
          s_and_b32 s29, s29, 3
          s_and_b32 s30, s3, 1
          s_lshr_b32 s31, s3, 1
          s_xor_b32 s32, s30, s31
          v_and_b32 v{t0}, 7, v0
          v_xor_b32 v{t0}, v{t0}, v{vq}
          s_lshl_b32 s33, s30, 2
          v_xor_b32 v{t0}, s33, v{t0}
          v_lshlrev_b32 v{t0}, 4, v{t0}
          v_lshrrev_b32 v{t1}, 3, v{vl}
          v_lshl_add_u32 v{vyo}, v{t1}, 7, v{t0}
          s_mul_i32 s34, s31, 20480
          s_lshl_b32 s33, s30, 10
          s_add_u32 s34, s34, s33
          s_mul_i32 s35, s28, 40960
          s_add_u32 s36, s35, s34
          s_add_u32 s36, s36, {YC}
          s_add_u32 s34, s34, {LY + 128}
          v_lshrrev_b32 v{t0}, 1, v{vq}
          v_and_b32 v{t1}, 1, v{vq}
          v_lshlrev_b32 v{t1}, 4, v{t1}
          v_lshl_add_u32 v{t2}, v{vc}, 5, v{t1}
          v_lshl_add_u32 v{vx1}, v{t0}, 9, v{t2}
          v_lshrrev_b32 v{t2}, 3, v{vc}
          v_lshl_add_u32 v{t2}, v{t2}, 2, v{t0}
          v_mul_u32_u24 v{t2}, 1280, v{t2}
          v_and_b32 v{t3}, 7, v{vc}
          v_lshl_add_u32 v{t3}, v{t3}, 5, v{t1}
          v_add_u32 v{vx2}, v{t2}, v{t3}
          s_mul_i32 s37, s3, {8*1280}
          s_add_u32 s37, s37, s35
          s_lshl_b32 s38, s29, 1
          s_add_u32 s38, s38, s30
          s_mul_i32 s39, s38, 102400
          s_mul_i32 s33, s31, 51200
          s_add_u32 s39, s39, s33
          s_add_u32 s39, s39, {W1P}""")
    SAr, SAi = V.get(4, 4), V.get(4, 4)
    T0c, T0s, T1c, T1s = (V.get(4, 2) for _ in range(4))
    B0 = [V.get(4, 4), V.get(4, 4)]
    B02l, B02h = V.get(4, 4), V.get(4, 4)
    B1l = [V.get(4, 4), V.get(4, 4)]; B1h = [V.get(4, 4), V.get(4, 4)]
    B12 = V.get(4, 4)
    Il, Ih = V.get(4, 4), V.get(4, 4)
    ry = V.get(6)
    wa = V.get(8); wa2 = V.get(4)
    ra = [V.get(8), V.get(8)]
    mk = V.mark()
    fc, fq4, fq1, sg, a0, ad, k0, k1_, k2_ = (V.get() for _ in range(9))
    KAP = 1.0 / (640 * 2048)
    p(f"""s_mov_b32 s50, -1
          s_mov_b32 s51, 0
          s_mov_b32 s52, 0x00ff00ff
          s_mov_b32 s53, 0x00ff00ff
          s_mov_b32 s54, 0x0000ffff
          s_mov_b32 s55, 0
          s_mov_b32 s56, 0xffff0000
          s_mov_b32 s57, 0xffff0000
          s_mov_b32 s58, 0x00ff00ff
          s_mov_b32 s59, 0xff00ff00
          v_cvt_f32_u32 v{fc}, v{vc}
          v_lshlrev_b32 v{t0}, 2, v{vq}
          v_cvt_f32_u32 v{fq4}, v{t0}
          v_and_b32 v{t0}, 4, v{t0}
          v_add_u32 v{t0}, 16, v{t0}
          v_cvt_f32_u32 v{fq1}, v{t0}
          v_cndmask_b32 v{sg}, -1.0, 1.0, s[50:51]
          v_mov_b32 v{t0}, {f32(3.0)}
          v_cndmask_b32 v{t0}, v{t0}, 0, s[50:51]
          v_add_f32 v{t0}, v{t0}, v{fq4}
          v_mul_f32 v{ad}, {f32(1/16)}, v{fc}
          v_mul_f32 v{a0}, v{t0}, v{ad}
          v_mul_f32 v{ad}, v{ad}, v{sg}""")
    for i in range(4):
        p(f"""v_fmamk_f32 v{t0}, v{ad}, {f32(float(i))}, v{a0}
              v_cos_f32 v{t1}, v{t0}
              v_sin_f32 v{t2}, v{t0}
              v_mul_f32 v{t3}, v{sg}, v{t1}
              v_mul_f32 v{t0}, v{sg}, v{t2}
              v_cvt_pk_bf16_f32 v{SAr+i}, v{t1}, -v{t0}
              v_cvt_pk_bf16_f32 v{SAi+i}, v{t2}, v{t3}""")
    p(f"""v_mov_b32 v{k2_}, {f32(2*KAP)}
          v_mov_b32 v{t0}, {f32(KAP)}
          v_cndmask_b32 v{k0}, v{k2_}, v{t0}, s[54:55]
          v_cndmask_b32 v{k1_}, v{k2_}, v{t0}, s[56:57]
          v_cndmask_b32 v{sg}, v{k2_}, 0, s[56:57]
          v_mul_f32 v{ad}, {f32(1/640)}, v{fc}""")
    for (cc, ss, fq, first, rest) in ((T0c, T0s, fq4, k0, k2_), (T1c, T1s, fq1, k1_, sg)):
        p(f"v_mul_f32 v{a0}, v{ad}, v{fq}")
        for r in range(4):
            sc = first if r == 0 else rest
            p(f"""v_fmamk_f32 v{t0}, v{ad}, {f32(float(r))}, v{a0}
                  v_cos_f32 v{t1}, v{t0}
                  v_sin_f32 v{t2}, v{t0}
                  v_mul_f32 v{cc+r}, v{sc}, v{t1}
                  v_mul_f32 v{ss+r}, v{sc}, v{t2}""")
    srd(p, 24, 10, WS_END)
    srd(p, 12, 4, S * D * 2)
    for n in range(5):
        p(f"s_add_u32 m0, s34, {4096*n}")
        p(f"buffer_load_dwordx4 v{vyo}, s[24:27], s36 offen lds", tag="y")
        p(f"buffer_load_dwordx4 v{vyo}, s[24:27], s36 offen offset:2048 lds", tag="y")
        if n < 4:
            p("s_add_u32 s36, s36, 4096")
    for n in range(2):
        p(f"buffer_load_dwordx4 {vr(AX+32+4*n,4,'a')}, v{vx2}, s[12:15], s37 offen offset:{1024+2560*n}")
    for row in (0, 4, 1, 5, 2, 6, 3, 7):
        p(f"s_add_u32 s33, s37, {1280*row}")
        p(f"buffer_load_dwordx4 {vr(AX+4*row,4,'a')}, v{vx1}, s[12:15], s33 offen")
    NW0 = 40
    def wload(pr, i):
        pr(f"buffer_load_dwordx4 {vr(AW+4*i,4,'a')}, v{vl16}, s[24:27], s39 offen offset:{(i%4)*1024}")
        if i % 4 == 3:
            pr("s_add_u32 s39, s39, 4096")
    for i in range(NW0):
        wload(p, i)
    p(f"""v_mov_b32 v{t0}, 0
          v_lshlrev_b32 v{t1}, 2, v{vl}
          s_mov_b64 exec, s[50:51]
          ds_write_b32 v{t1}, v{t0} offset:{LY}
          s_mov_b64 exec, -1""")
    for T in range(3):
        if T < 2:
            p(f"v_add_f32 v{ad}, {f32(16.0*T)}, v{fc}")
        else:
            p(f"""v_and_b32 v{t0}, 7, v{vc}
                  v_add_u32 v{t0}, 32, v{t0}
                  v_cvt_f32_u32 v{ad}, v{t0}""")
        p(f"v_mul_f32 v{ad}, {f32(1/40)}, v{ad}")
        for t, fq in ((0, fq4), (1, fq1)):
            p(f"v_mul_f32 v{a0}, v{ad}, v{fq}")
            for r in range(4):
                p(f"""v_fmamk_f32 v{t0}, v{ad}, {f32(float(r))}, v{a0}
                      v_cos_f32 v{t1}, v{t0}
                      v_sin_f32 v{t2}, v{t0}""")
                if T < 2 and t == 0:
                    p(f"v_cvt_pk_bf16_f32 v{B0[T]+r}, v{t1}, -v{t2}")
                else:
                    p(f"v_cvt_pk_bf16_f32 v{t3}, v{t1}, -v{t2}")
                    if T < 2:
                        p(f"v_cndmask_b32 v{B1l[T]+r}, 0, v{t3}, s[50:51]\nv_cndmask_b32 v{B1h[T]+r}, v{t3}, 0, s[50:51]")
                    elif t == 0:
                        p(f"v_cndmask_b32 v{B02l+r}, 0, v{t3}, s[52:53]\nv_cndmask_b32 v{B02h+r}, v{t3}, 0, s[52:53]")
                    else:
                        p(f"v_cndmask_b32 v{B12+r}, 0, v{t3}, s[58:59]")
    p(f"""v_and_b32 v{t0}, 1, v{vc}
          v_lshlrev_b32 v{t0}, 4, v{t0}
          v_mov_b32 v{t1}, 0x3f80
          v_lshlrev_b32 v{t1}, v{t0}, v{t1}
          v_lshrrev_b32 v{t0}, 1, v{vc}
          v_and_b32 v{t2}, 1, v{vq}
          v_lshlrev_b32 v{t2}, 2, v{t2}
          v_sub_u32 v{t0}, v{t0}, v{t2}""")
    for k in range(4):
        p(f"""v_cmp_eq_u32 vcc, {k}, v{t0}
              v_cndmask_b32 v{t3}, 0, v{t1}, vcc
              v_cndmask_b32 v{Il+k}, 0, v{t3}, s[50:51]
              v_cndmask_b32 v{Ih+k}, v{t3}, 0, s[50:51]""")
    def yaddr(dst_list, k1reg, chunkreg_text):
        p(f"""v_mul_u32_u24 v{t0}, 160, v{vq}
              v_add_u32 v{t0}, v{t0}, v{k1reg}
              v_sub_u32 v{t1}, 520, v{t0}
              v_cndmask_b32 v{t0}, v{t1}, v{t0}, s[50:51]
              v_subrev_u32 v{t1}, 1, v{t0}
              v_bfe_u32 v{t1}, v{t1}, 1, 3
              v_xor_b32 v{t1}, {chunkreg_text}, v{t1}
              v_lshlrev_b32 v{t1}, 4, v{t1}
              v_lshl_add_u32 v{dst_list[0][0]}, v{t0}, 7, v{t1}""")
        for d, x in dst_list[1:]:
            p(f"v_xor_b32 v{d}, {x}, v{dst_list[0][0]}")
    p("s_lshl_b32 s33, s3, 1")
    yaddr([(ry, 0), (ry+1, 64), (ry+2, 16), (ry+3, 80)], vc, "s33")
    p(f"""v_and_b32 v{t2}, 7, v{vc}
          v_add_u32 v{t2}, 16, v{t2}
          v_lshrrev_b32 v{t3}, 3, v{vc}
          v_add_u32 v{t3}, s33, v{t3}""")
    yaddr([(ry+4, 0), (ry+5, 64)], t2, f"v{t3}")
    p(f"""s_mul_i32 s33, s31, 20480
          s_add_u32 s33, s33, {LA}
          s_lshl_b32 s40, s30, 3
          v_lshrrev_b32 v{t0}, 1, v{vq}
          v_and_b32 v{t1}, 1, v{vq}
          v_lshlrev_b32 v{t1}, 3, v{t1}
          v_lshl_add_u32 v{t0}, v{t0}, 8, v{t1}
          v_add_u32 v{t0}, s33, v{t0}
          v_xor_b32 v{t1}, s40, v{vc}
          v_lshl_add_u32 v{t1}, v{t1}, 4, v{t0}
          v_lshl_add_u32 v{wa}, v{vc}, 9, v{t1}
          v_and_b32 v{t2}, 7, v{vc}
          v_lshrrev_b32 v{t1}, 3, v{vc}
          v_lshlrev_b32 v{t1}, 2, v{t1}
          v_xor_b32 v{t1}, v{t1}, v{t2}
          v_xor_b32 v{t1}, s40, v{t1}
          v_lshl_add_u32 v{t1}, v{t1}, 4, v{t0}
          v_lshl_add_u32 v{wa2}, v{t2}, 9, v{t1}""")
    for r in range(1, 8):
        p(f"v_xor_b32 v{wa+r}, {16*r}, v{wa}")
    for r in range(1, 4):
        p(f"v_xor_b32 v{wa2+r}, {16*r}, v{wa2}")
    p(f"""v_lshrrev_b32 v{t0}, 1, v{vq}
          v_xor_b32 v{t0}, v{t0}, v{vc}
          v_lshlrev_b32 v{t0}, 4, v{t0}
          v_lshl_add_u32 v{t0}, v{vq}, 8, v{t0}
          s_mul_i32 s41, s31, 10240
          s_add_u32 s41, s41, {LA}
          s_mul_i32 s42, s32, 20480
          s_add_u32 s43, s41, 20480
          s_sub_u32 s43, s43, s42
          s_add_u32 s42, s42, s41
          s_lshl_b32 s44, s31, 6""")
    for n in range(8):
        p(f"""s_add_u32 s33, s44, {32*n}
              s_and_b32 s33, s33, 0xf0
              v_xor_b32 v{t1}, s33, v{t0}
              v_add_u32 v{ra[0]+n}, s42, v{t1}
              v_add_u32 v{ra[1]+n}, s43, v{t1}""")
    p.wait_tag("y")
    p("s_waitcnt lgkmcnt(0)\ns_barrier")
    q = Prog()
    V.release(mk)
    R = [V.get(16, 4) for _ in range(3)]
    Aop = [V.get(12, 4)] * 2
    DA = [V.get(24, 4)]
    E = [V.get(12, 4) for _ in range(2)]
    DB = [V.get(20, 4)]
    TR = [(V.get(4, 2), V.get(4, 2))]
    for s_ in range(3):
        for i in range(4):
            q(f"ds_read_b128 {vr(R[s_]+4*i,4)}, v{ry+2*s_+(i&1)} offset:{LY+5120*i}", tag="y")
    for i in range(NW0, 50):
        wload(q, i)
    for rho in range(4):
        A_, da, e, db = Aop[rho & 1], DA[0], E[rho & 1], DB[0]
        tr, ti = TR[0]
        for s_ in range(3):
            for h in range(2):
                o = rho & 1
                q(f"v_pk_mov_b32 {vr(A_+4*s_+2*h,2)}, {vr(R[s_]+8*h+(rho&2),2)}, {vr(R[s_]+8*h+4+(rho&2),2)} op_sel:[{o},{o}]")
        for s_ in range(3):
            q(f"{MF} {vr(da+8*s_,4)}, {vr(A_+4*s_,4)}, {vr(SAr,4)}, 0")
            q(f"{MF} {vr(da+8*s_+4,4)}, {vr(A_+4*s_,4)}, {vr(SAi,4)}, 0")
        for s_ in range(3):
            cc, ss = (T0c, T0s) if s_ < 2 else (T1c, T1s)
            cmul(q, da+8*s_, da+8*s_+4, cc, ss, tr, ti, +1)
            for r in range(4):
                q(f"v_cvt_pk_bf16_f32 v{e+4*s_+r}, v{tr+r}, v{ti+r}")
        for ch in range(2):
            row = rho + 4 * ch
            for T in range(2):
                d_ = vr(db + 8*ch + 4*T, 4)
                q(f"{MF} {d_}, {vr(Ih if T else Il,4)}, {vr(AX+4*row,4,'a')}, 0")
                q(f"{MF} {d_}, {vr(e+4*ch,4)}, {vr(B0[T],4)}, {d_}")
                q(f"{MF} {d_}, {vr(e+8,4)}, {vr(B1h[T] if ch else B1l[T],4)}, {d_}")
        d_ = vr(db + 16, 4)
        q(f"{MF} {d_}, {vr(Ih if rho & 1 else Il,4)}, {vr(AX+32+4*(rho>>1),4,'a')}, 0")
        q(f"{MF} {d_}, {vr(e,4)}, {vr(B02l,4)}, {d_}")
        q(f"{MF} {d_}, {vr(e+4,4)}, {vr(B02h,4)}, {d_}")
        q(f"{MF} {d_}, {vr(e+8,4)}, {vr(B12,4)}, {d_}")
        for k in range(5):
            d0 = db + 4 * k
            q(f"v_cvt_pk_bf16_f32 v{d0}, v{d0}, v{d0+1}")
            q(f"v_cvt_pk_bf16_f32 v{d0+1}, v{d0+2}, v{d0+3}")
            if k < 4:
                q(f"ds_write_b64 v{wa+rho+4*(k>>1)}, {vr(d0,2)} offset:{8192*(k&1)}", tag="a")
            else:
                q(f"ds_write_b64 v{wa2+rho}, {vr(d0,2)} offset:16384", tag="a")
    p.extend(schedule(q, "k3 ifft"))
    p("s_waitcnt lgkmcnt(0)\ns_barrier")
    V.release(mk)
    g = Prog()
    ACC = V.get(40, 4)
    SS, SG = V.get(4, 4), V.get(4, 4)
    ONE = V.get(4, 4)
    BF = V.get(64, 4)
    vho = V.get()
    CSV = B0[0]
    g(f"""s_mul_i32 s33, s38, 320
          s_add_u32 s33, s33, {CS}
          v_lshlrev_b32 v{t0}, 4, v{vq}""")
    for f in range(5):
        g(f"buffer_load_dwordx4 {vr(CSV+4*f,4)}, v{t0}, s[24:27], s33 offen offset:{64*f}")
    g(f"""v_mov_b32 v{ONE}, 0x3f803f80
          v_mov_b32 v{ONE+1}, 0x3f803f80
          v_mov_b32 v{ONE+2}, 0x3f803f80
          v_mov_b32 v{ONE+3}, 0x3f803f80
          s_cmp_eq_u32 s3, s29
          s_cselect_b32 s33, 0, 0x80000000
          v_add_u32 v{vho}, s33, v{vl16}
          s_lshl_b32 s45, s28, 1
          s_add_u32 s45, s45, s32
          s_mul_i32 s46, s45, 20480
          s_mul_i32 s33, s31, 10240
          s_add_u32 s47, s46, s33
          s_add_u32 s47, s47, {HB}""")
    for n in range(10):
        for lt in range(2):
            b_ = BF + 4 * ((2*n + lt) % 16)
            g(f"ds_read_b128 {vr(b_,4)}, v{ra[lt]+(n%8)} offset:{1024*n}")
        for lt in range(2):
            b_ = vr(BF + 4 * ((2*n + lt) % 16), 4)
            for f in range(5):
                acc = vr(ACC + 8*f + 4*lt, 4)
                g(f"{MF} {acc}, {vr(AW+4*(5*n+f),4,'a')}, {b_}, {acc if n else 0}")
            if lt == 0:
                g(f"{MF} {vr(SS,4)}, {vr(ONE,4)}, {b_}, {vr(SS,4) if n else 0}")
                g(f"{MF} {vr(SG,4)}, {b_}, {b_}, {vr(SG,4) if n else 0}")
                g(f"buffer_store_dwordx4 {b_}, v{vho}, s[24:27], s47 offen offset:{(n%4)*1024} sc1")
                if n % 4 == 3:
                    g("s_add_u32 s47, s47, 4096")
    vrw, vrr, vsw, vsr, vgo2 = (V.get() for _ in range(5))
    g(f"""s_mul_i32 s33, s3, 5120
          v_add_u32 v{vrw}, s33, v{vl16}
          s_xor_b32 s33, s3, 2
          s_mul_i32 s33, s33, 5120
          v_add_u32 v{vrr}, s33, v{vl16}
          s_lshl_b32 s33, s3, 7
          v_lshl_add_u32 v{vsw}, v{vc}, 3, s33
          v_xor_b32 v{vsr}, 0x180, v{vsw}
          s_mov_b32 s60, 0xaaaaaaaa
          s_mov_b32 s61, 0xaaaaaaaa
          s_mov_b32 s62, 0xcccccccc
          s_mov_b32 s63, 0xcccccccc
          s_mov_b32 s64, 0x00f0000f
          s_mov_b32 s65, 0xf0000f00""")
    for f in range(5):
        g(f"ds_write_b128 v{vrw}, {vr(ACC+8*f+4,4)} offset:{LR+1024*f}", tag="r")
    g(f"""v_cndmask_b32 v{SG}, v{SG}, v{SG+1}, s[60:61]
          v_cndmask_b32 v{SG+2}, v{SG+2}, v{SG+3}, s[60:61]
          v_cndmask_b32 v{SS+1}, v{SG}, v{SG+2}, s[62:63]""")
    p.extend(schedule(g, "k3 gemm"))
    p(f"""s_mov_b64 exec, s[64:65]
          ds_write_b64 v{vsw}, {vr(SS,2)} offset:{LS}
          s_mov_b64 exec, -1
          s_waitcnt lgkmcnt(0)
          s_barrier""")
    e = Prog()
    e(f"ds_read_b64 {vr(SS,2)}, v{vsw} offset:{LS}")
    e(f"ds_read_b64 {vr(SS+2,2)}, v{vsr} offset:{LS}")
    for f in range(5):
        e(f"ds_read_b128 {vr(ACC+8*f+4,4)}, v{vrr} offset:{LR+1024*f}")
    vk0 = V.get(2, 2); rr = V.get(2, 2); mr = V.get(2, 2); st = V.get(2, 2)
    e(f"""v_mov_b32 v{vk0}, {f32(GK0)}
          v_mov_b32 v{vk0+1}, {f32(GK0)}
          s_mov_b32 s66, {f32(GK1)}
          s_mov_b32 s67, {f32(GK1)}
          v_pk_add_f32 {vr(SS,2)}, {vr(SS,2)}, {vr(SS+2,2)}
          v_mul_f32 v{st}, {f32(1/640)}, v{SS}
          v_mul_f32 v{t0}, {f32(1/640)}, v{SS+1}
          v_fma_f32 v{t0}, -v{st}, v{st}, v{t0}
          v_max_f32 v{t0}, 0, v{t0}
          v_add_f32 v{t1}, {f32(1e-5)}, v{t0}
          v_rsq_f32 v{st+1}, v{t1}
          v_mul_f32 v{t0}, v{t0}, v{st+1}
          v_fmaak_f32 v{t0}, v{t0}, v{st+1}, {f32(1e-5)}
          v_rsq_f32 v{t0}, v{t0}
          v_mul_f32 v{rr}, v{t0}, v{st+1}
          v_mul_f32 v{mr}, v{rr}, v{st}
          s_mul_i32 s33, s29, 5120
          s_add_u32 s46, s46, s33
          s_add_u32 s46, s46, {GB}
          s_mul_i32 s33, s30, 3072
          s_add_u32 s48, s46, s33
          s_lshl_b32 s33, s30, 9
          s_add_u32 s49, s46, s33
          v_lshrrev_b32 v{t2}, 1, v{vq}
          v_lshl_add_u32 v{t2}, v{t2}, 4, v{vc}
          v_lshlrev_b32 v{vgo2}, 4, v{t2}
          s_lshl_b32 s45, s45, 7
          s_add_u32 s45, s45, {ST1}
          v_lshlrev_b32 v{t3}, 3, v{vc}""")
    GT = [BF + 4 * k for k in range(5)]
    for f in range(5):
        x = ACC + 8 * f
        for h in (0, 2):
            e(f"v_pk_add_f32 {vr(x+h,2)}, {vr(x+h,2)}, {vr(x+4+h,2)}")
            e(f"v_pk_mul_f32 {vr(CSV+4*f+h,2)}, {vr(CSV+4*f+h,2)}, {vr(mr,2)} op_sel_hi:[1,0]")
            e(f"v_pk_fma_f32 {vr(x+h,2)}, {vr(x+h,2)}, {vr(rr,2)}, {vr(CSV+4*f+h,2)} op_sel_hi:[1,0,1] neg_lo:[0,0,1] neg_hi:[0,0,1]")
        gelu4(e, x, GT[f], vk0, 66)
    O = BF + 32
    for pr_ in range(2):
        for r in range(4):
            e(f"v_cvt_pk_bf16_f32 v{O+4*pr_+r}, v{ACC+16*pr_+r}, v{ACC+16*pr_+8+r}")
        e(f"buffer_store_dwordx4 {vr(O+4*pr_,4)}, v{vl16}, s[24:27], s48 offen offset:{1024*pr_} sc1")
    x = ACC + 32
    e(f"""v_cvt_pk_bf16_f32 v{O+8}, v{x}, v{x+1}
          v_cvt_pk_bf16_f32 v{O+10}, v{x}, v{x+1}
          v_cvt_pk_bf16_f32 v{O+9}, v{x+2}, v{x+3}
          v_cvt_pk_bf16_f32 v{O+11}, v{x+2}, v{x+3}
          v_permlane16_swap_b32 v{O+8}, v{O+10}
          v_permlane16_swap_b32 v{O+9}, v{O+11}
          s_mov_b32 s55, 0x0000ffff""")
    p.extend(schedule(e, "k3 epi"))
    p(f"""s_mov_b64 exec, s[54:55]
          buffer_store_dwordx4 {vr(O+8,4)}, v{vgo2}, s[24:27], s49 offen offset:2048 sc1
          s_mov_b32 s55, 0
          s_mov_b64 exec, s[54:55]
          buffer_store_dwordx2 {vr(st,2)}, v{t3}, s[24:27], s45 offen sc1
          K3_END:""")
    return [head, p], V.hi, 240, LA + 40960
```

```python
S, D, F = 2048, 640, 1536
XW   = 0
YC   = XW + 256 * 20480
HB   = YC + 2621440
GB   = HB + 2621440
X1B  = GB + 2621440
UB   = X1B + 2621440
W1P  = UB + 6291456
W2P  = W1P + 819200
W3P  = W2P + 819200
W4P  = W3P + 1966080
CSP  = W4P + 1966080
CS   = CSP + 20 * 8704
ST1  = CS + 8704
ST3  = ST1 + 2048 * 8
WS_END = ST3 + 8 * 2048 * 8
assert all(x % 128 == 0 for x in (YC, HB, GB, X1B, UB, W1P, W2P, W3P, W4P, CSP, CS, ST1, ST3))
```

```python
import sys
from build import *
from k1 import k1
from k2 import k2
from k3 import k3
from gemm import gemm
ks = []
pr, vg, lds = k1()
ks.append(("k1_kernel", pr, vg, 0, 512, 256, lds))
pr, vg, lds = k2()
ks.append(("k2_kernel", pr, vg, 0, 169, 256, lds))
pr, vg, ag, lds = k3()
ks.append(("k3_kernel", pr, vg, ag, 256, 256, lds))
for k in ("k4", "k5", "k6"):
    pr, vg, ag, lds = gemm(k, k)
    ks.append((k + "_kernel", pr, vg, ag, 256, 256, lds))
build(ks, sys.argv[1] if len(sys.argv) > 1 else "cur.s")
```

```python
import struct
from dsl import *
from layout import *
MF = "v_mfma_f32_16x16x32_bf16"
def f32(x):
    return "0x%08x" % struct.unpack("<I", struct.pack("<f", x))[0]
def srd(p, d, lo, nbytes):
    p(f"""s_mov_b32 s{d}, s{lo}
          s_mov_b32 s{d+1}, s{lo+1}
          s_mov_b32 s{d+2}, {nbytes}
          s_mov_b32 s{d+3}, 0x20000""")
def cmul(p, a, b, c_, s_, tr, ti, sign, n=4):
    for r in range(n):
        p(f"v_mul_f32 v{tr+r}, v{a+r}, v{c_+r}")
        p(f"v_mul_f32 v{ti+r}, v{b+r}, v{c_+r}")
        if sign > 0:
            p(f"v_fma_f32 v{tr+r}, -v{b+r}, v{s_+r}, v{tr+r}")
            p(f"v_fmac_f32 v{ti+r}, v{a+r}, v{s_+r}")
        else:
            p(f"v_fmac_f32 v{tr+r}, v{b+r}, v{s_+r}")
            p(f"v_fma_f32 v{ti+r}, -v{a+r}, v{s_+r}, v{ti+r}")
GK0 = -2.0 * 0.7978845608028654 * 1.4426950408889634
GK1 = GK0 * 0.044715
def gelu4(p, x, t, vk0, sk1):
    for h in (0, 2):
        p(f"v_pk_mul_f32 {vr(t+h,2)}, {vr(x+h,2)}, {vr(x+h,2)}")
        p(f"v_pk_fma_f32 {vr(t+h,2)}, {vr(t+h,2)}, s[{sk1}:{sk1+1}], {vr(vk0,2)}")
        p(f"v_pk_mul_f32 {vr(t+h,2)}, {vr(t+h,2)}, {vr(x+h,2)}")
    for r in range(4):
        p(f"v_exp_f32 v{t+r}, v{t+r}")
    for h in (0, 2):
        p(f"v_pk_add_f32 {vr(t+h,2)}, {vr(t+h,2)}, 1.0 op_sel_hi:[1,0]")
    for r in range(4):
        p(f"v_rcp_f32 v{t+r}, v{t+r}")
    for h in (0, 2):
        p(f"v_pk_mul_f32 {vr(x+h,2)}, {vr(x+h,2)}, {vr(t+h,2)}")
```

```python
import re

import os
PROFILE = bool(os.environ.get("PROFILE"))
TRANS = ("v_exp_f32", "v_log_f32", "v_rcp_f32", "v_rsq_f32", "v_sqrt_f32", "v_sin_f32", "v_cos_f32")

def _regs(tok):
    tok = tok.strip()
    if tok.startswith("-"):
        tok = tok[1:]
    m = re.fullmatch(r"abs\((.*)\)", tok)
    if m:
        tok = m.group(1)
    m = re.fullmatch(r"\|(.*)\|", tok)
    if m:
        tok = m.group(1)
    m = re.fullmatch(r"([vsa])(\d+)", tok)
    if m:
        return [(m.group(1), int(m.group(2)))]
    m = re.fullmatch(r"([vsa])\[(\d+):(\d+)\]", tok)
    if m:
        return [(m.group(1), i) for i in range(int(m.group(2)), int(m.group(3)) + 1)]
    if tok == "vcc":
        return [("vcc", 0)]
    if tok == "exec":
        return [("exec", 0)]
    if tok == "m0":
        return [("m0", 0)]
    return []

class Ins:
    __slots__ = ("text", "op", "w", "r", "cls", "passes", "srcc", "srcab", "dpp", "wide", "lds_dma", "tag")
    def __init__(self, text, tag=None):
        self.text = text
        self.tag = tag
        body = text.split(";")[0].strip()
        parts = body.split(None, 1)
        op = parts[0]
        self.op = op
        rest = parts[1] if len(parts) > 1 else ""
        toks = []
        depth = 0
        cur = ""
        for ch in rest:
            if ch in "[(":
                depth += 1
            if ch in "])":
                depth -= 1
            if ch == "," and depth == 0:
                toks.append(cur.strip()); cur = ""
            else:
                cur += ch
        if cur.strip():
            toks.append(cur.strip())
        mods = ""
        if toks:
            last = toks[-1].split(None, 1)
            toks[-1] = last[0]
            if len(last) > 1:
                mods = last[1]
        R = [_regs(t) for t in toks]
        self.w, self.r = [], []
        self.passes = 0
        self.srcc, self.srcab = [], []
        self.dpp = ("row_" in mods) or ("quad_perm" in mods) or ("wave_" in mods) or op.endswith("_dpp")
        self.wide = False
        self.lds_dma = False
        flat = lambda L: [x for l in L for x in l]
        if op.startswith("v_mfma"):
            self.cls = "mfma"
            self.passes = 8 if "32x32" in op else 4
            self.w = R[0]; self.r = flat(R[1:]); self.srcc = R[3]; self.srcab = R[1] + R[2]
        elif op.startswith("v_"):
            self.cls = "trans" if op.replace("_e32", "").replace("_e64", "") in TRANS else ("dot" if op.startswith("v_dot") else "valu")
            self.w = list(R[0]); self.r = flat(R[1:])
            if op.startswith(("v_fmac", "v_pk_fmac", "v_dot2c", "v_writelane")):
                self.r += R[0]
            if op.startswith(("v_permlane16_swap", "v_permlane32_swap", "v_swap")):
                self.w = R[0] + R[1]; self.r = R[0] + R[1]
            if op.startswith(("v_add_co", "v_sub_co", "v_addc_co", "v_subb_co")):
                self.w = R[0] + R[1]; self.r = flat(R[2:])
            if self.dpp:
                self.r += R[0]
            if op.startswith("v_cndmask") and len(toks) == 3:
                self.r += [("vcc", 0)]
        elif op.startswith(("buffer_load", "global_load")):
            self.cls = "vmem"
            if " lds" in (" " + mods) or "_lds_" in op:
                self.lds_dma = True
                self.r = flat(R) + [("m0", 0)]
            else:
                self.w = R[0]; self.r = flat(R[1:])
        elif op.startswith(("buffer_store", "global_store", "buffer_atomic", "global_atomic")):
            self.cls = "vmem"
            self.r = flat(R)
            self.wide = op.endswith(("x3", "x4"))
            if "atomic" in op and "sc0" in mods:
                self.w = R[0]
        elif op.startswith(("buffer_inv", "buffer_wbl2")):
            self.cls = "vmem"
        elif op.startswith("ds_"):
            self.cls = "ds"
            if op.startswith(("ds_read", "ds_bpermute", "ds_permute", "ds_swizzle")):
                self.w = R[0]; self.r = flat(R[1:])
            else:
                self.r = flat(R)
        elif op.startswith(("s_load", "s_memtime", "s_memrealtime", "s_buffer_load")):
            self.cls = "smem"
            self.w = R[0]; self.r = flat(R[1:])
        elif op in ("s_waitcnt", "s_nop", "s_barrier", "s_endpgm", "s_sleep", "s_setprio", "s_branch") or op.startswith("s_cbranch"):
            self.cls = "ctl"
        elif op.startswith("s_cmp") or op.startswith("s_bitcmp"):
            self.cls = "salu"
            self.r = flat(R)
        elif op.startswith("s_"):
            self.cls = "salu"
            self.w = list(R[0]); self.r = flat(R[1:])
            if "saveexec" in op:
                self.w += [("exec", 0)]
            if op.startswith(("s_addk", "s_mulk")):
                self.r += R[0]
        elif op.endswith(":"):
            self.cls = "label"
        else:
            raise ValueError("unknown instruction: " + text)

def is_valu(i):
    return i.cls in ("valu", "trans", "dot")

class Prog:
    def __init__(self):
        self.items = []
    def __call__(self, text, tag=None):
        for line in text.strip().split("\n"):
            line = line.strip()
            if line:
                self.items.append(Ins(line, tag))
        return self
    def wait_tag(self, tag):
        self.items.append(("wait_tag", tag))
    def wait_lds(self):
        self.items.append(Ins("s_waitcnt lgkmcnt(0)"))
    def extend(self, other):
        self.items.extend(other.items)
    def stamp(self, i):
        if PROFILE:
            self.items.append(("fence",))
            self.items.append(Ins(f"s_memtime s[{70+2*i}:{71+2*i}]"))
            self.items.append(Ins("s_waitcnt lgkmcnt(0)"))
    def stamps_out(self, kidx, n, srd=24):
        if not PROFILE:
            return
        from layout import PROF
        self("s_waitcnt vmcnt(0)")
        self.stamp(n)
        Prog._lab = getattr(Prog, "_lab", 0) + 1
        lab = f"PROF_SKIP{Prog._lab}"
        self(f"s_mov_b64 exec, -1\nv_mov_b32 v1, 0\nv_cmp_eq_u32 vcc, 0, v0\ns_and_saveexec_b64 s[66:67], vcc\ns_cbranch_execz {lab}")
        self(f"s_lshl_b32 s68, s2, 6\ns_add_u32 s68, s68, {PROF + kidx*65536}")
        for i in range(n + 1):
            self(f"v_mov_b32 v2, s{70+2*i}\nbuffer_store_dword v2, v1, s[{srd}:{srd+3}], s68 offen offset:{4*i}")
        self(f"{lab}:")
    def comment(self, c):
        self.items.append(("comment", c))

def interleave(*progs, weights=None):
    out = Prog()
    n = [len(p.items) for p in progs]
    pos = [0] * len(progs)
    total = sum(n)
    for _ in range(total):
        best, bk = None, None
        for k in range(len(progs)):
            if pos[k] < n[k]:
                frac = (pos[k] + 0.5) / n[k]
                if best is None or frac < best:
                    best, bk = frac, k
        out.items.append(progs[bk].items[pos[bk]])
        pos[bk] += 1
    return out

def _need(prev, cur):
    n = 0
    pw, cw, cr = set(prev.w), set(cur.w), set(cur.r)
    vec = lambda s: {x for x in s if x[0] in "va"}
    sc = lambda s: {x for x in s if x[0] in ("s", "vcc")}
    if prev.cls == "mfma":
        big = 8 if prev.passes == 4 else 12
        if cur.cls == "mfma":
            if pw & set(cur.srcab):
                n = max(n, big)
            if pw & set(cur.srcc):
                if not (prev.w == cur.srcc and prev.passes == cur.passes):
                    n = max(n, big - 2)
            elif pw & cw:
                n = max(n, big)
        elif is_valu(cur) or cur.cls in ("vmem", "ds"):
            if pw & (cr | cw):
                n = max(n, big)
            if is_valu(cur) and set(prev.srcc) & cw:
                n = max(n, 3 if prev.passes == 4 else 7)
            if cur.cls in ("vmem", "ds") and set(prev.srcc) & cw:
                n = max(n, 3 if prev.passes == 4 else 7)
    if is_valu(prev):
        if cur.cls == "mfma" and vec(pw) & cr:
            n = max(n, 3 if prev.cls == "dot" else 2)
        if prev.cls == "trans" and is_valu(cur) and cur.cls != "trans" and pw & cr:
            n = max(n, 1)
        if prev.cls == "dot" and (pw & (cr | cw)):
            if not (cur.op == prev.op and not (pw & set(cur.r[:2]))):
                n = max(n, 3)
        if is_valu(cur) and cur.dpp and vec(pw) & cr:
            n = max(n, 2)
        if cur.op.startswith("v_permlane") and vec(pw) & cr:
            n = max(n, 2)
        if cur.op.startswith(("v_readlane", "v_readfirstlane")) and vec(pw) & cr:
            n = max(n, 1)
        if sc(pw):
            if is_valu(cur) and sc(pw) & cr:
                n = max(n, 4 if cur.op.startswith(("v_readlane", "v_writelane")) else 2)
            if cur.cls == "vmem" and sc(pw) & cr:
                n = max(n, 5)
            if cur.cls in ("salu", "smem") and sc(pw) & cr:
                n = max(n, 1)
        if ("sdwa" in prev.text or "op_sel:" in prev.text and "pk_" not in prev.op) and is_valu(cur) and pw & (cr | cw):
            n = max(n, 1)
    if prev.cls == "vmem" and prev.wide and vec(set(prev.r)) & cw:
        n = max(n, 2)
    if prev.cls == "ds" and prev.op.endswith(("b128", "b96")) and not prev.w and vec(set(prev.r)) & cw:
        n = max(n, 2)
    if prev.cls == "salu" and ("m0", 0) in pw and cur.lds_dma:
        n = max(n, 1)
    return n

LG_SLACK = 3
def finalize(prog, stats=None):
    out = []
    lines = []
    vm = []
    lg = []
    def emit(i):
        out.append(i); lines.append("  " + i.text if i.cls != "label" else i.text)
    def states(i):
        if i.op == "s_nop":
            return int(i.text.split()[1], 0) + 1
        return 0 if i.cls == "label" else 1
    def wait(vn=None, ln=None):
        t = "s_waitcnt"
        if vn is not None:
            t += f" vmcnt({min(vn, 63)})"
            del vm[:len(vm) - min(vn, 63) if min(vn, 63) < len(vm) else 0]
        if ln is not None:
            t += f" lgkmcnt({min(ln, 15)})"
            del lg[:len(lg) - min(ln, 15) if min(ln, 15) < len(lg) else 0]
        emit(Ins(t))
    for it in prog.items:
        if isinstance(it, tuple):
            if it[0] == "comment":
                lines.append("  ; " + it[1])
            elif it[0] == "wait_tag":
                idx = max((k for k, e in enumerate(vm) if e[1] == it[1]), default=-1)
                if idx >= 0:
                    wait(vn=len(vm) - 1 - idx)
            continue
        i = it
        if i.op == "s_waitcnt":
            m = re.search(r"vmcnt\((\d+)\)", i.text)
            if m:
                k = int(m.group(1)); del vm[:max(0, len(vm) - k)]
            m = re.search(r"lgkmcnt\((\d+)\)", i.text)
            if m:
                k = int(m.group(1)); del lg[:max(0, len(lg) - k)]
            emit(i); continue
        touched = set(i.r) | set(i.w)
        vn = ln = None
        idx = max((k for k, e in enumerate(vm) if e[0] & touched), default=-1)
        if idx >= 0:
            vn = len(vm) - 1 - idx
        idx = max((k for k, e in enumerate(lg) if e[0] & touched), default=-1)
        if idx >= 0:
            ln = 0 if any(e[1] for e in lg) else len(lg) - 1 - idx
            if ln >= 8:
                ln -= LG_SLACK
        if i.cls == "vmem" and len(vm) >= 63:
            vn = min(vn if vn is not None else 62, 62)
        if vn is not None or ln is not None:
            wait(vn, ln)
        if i.cls not in ("label", "ctl"):
            need, dist = 0, 0
            for p in reversed(out[-24:]):
                if p.cls not in ("ctl", "label"):
                    need = max(need, _need(p, i) - dist)
                dist += states(p)
                if dist >= 14:
                    break
            while need > 0:
                k = min(need, 16)
                emit(Ins(f"s_nop {k-1}"))
                if stats is not None:
                    stats["nops"] = stats.get("nops", 0) + k
                need -= k
        emit(i)
        if i.cls == "vmem":
            vm.append((set(i.w), i.tag))
        elif i.cls == "ds":
            lg.append((set(i.w), False))
        elif i.cls == "smem":
            lg.append((set(i.w), True))
    if stats is not None:
        for i in out:
            stats[i.cls] = stats.get(i.cls, 0) + 1
    return "\n".join(lines) + "\n"

def kernel_text(name, prog, vgprs, agprs=0, sgprs=96, show=True):
    st = {}
    body = finalize(prog, st)
    if show:
        print(name, st)
    acc = (vgprs + 3) // 4 * 4
    nfv = acc + agprs if agprs else vgprs
    code = f""".text
.globl {name}
.p2align 8
.type {name},@function
{name}:
{body}  s_endpgm
"""
    desc = f""".p2align 6
.amdhsa_kernel {name}
  .amdhsa_next_free_vgpr {nfv}
  .amdhsa_next_free_sgpr {sgprs}
  .amdhsa_accum_offset {acc}
  .amdhsa_group_segment_fixed_size 0
  .amdhsa_kernarg_size 88
  .amdhsa_user_sgpr_count 2
  .amdhsa_user_sgpr_kernarg_segment_ptr 1
  .amdhsa_system_sgpr_workgroup_id_x 1
.end_amdhsa_kernel
"""
    return code, desc

class Alloc:
    def __init__(self, start, limit, kind="v"):
        self.n, self.limit, self.kind = start, limit, kind
        self.hi = start
    def get(self, count=1, align=1):
        self.n = (self.n + align - 1) // align * align
        r = self.n
        self.n += count
        self.hi = max(self.hi, self.n)
        assert self.n <= self.limit, f"out of {self.kind} registers"
        return r
    def mark(self):
        return self.n
    def release(self, m):
        self.n = m

def vr(b, n, k="v"):
    return f"{k}{b}" if n == 1 else f"{k}[{b}:{b+n-1}]"

_NO_SCC_W = ("s_mov", "s_mul_i32", "s_cselect", "s_movk", "s_mulk", "s_getreg", "s_mul_hi", "s_getpc", "s_setprio")
def _rw(i):
    r, w = set(i.r), set(i.w)
    if i.cls == "salu":
        if not i.op.startswith(_NO_SCC_W):
            w.add(("scc", 0))
        if i.op.startswith(("s_cselect", "s_addc", "s_subb")):
            r.add(("scc", 0))
    if i.cls in ("valu", "trans", "dot", "mfma", "vmem", "ds"):
        r.add(("exec", 0))
    if i.cls == "vmem":
        w.add(("vmq", 0))
    if i.cls == "smem":
        w.add(("smq", 0))
    if i.cls == "ds":
        region = i.tag or "lds"
        if i.w:
            r.add(("ldsmem", region))
        else:
            w.add(("ldsmem", region))
    return r, w

def _issue(i):
    if i.cls == "mfma": return 8
    if i.cls == "trans": return 8
    if i.cls in ("valu", "dot"): return 4.2
    return 4

def _lat(p, c, kind):
    if kind != "raw":
        return max(_issue(p), 4 * (_need(p, c) + 1))
    if p.cls == "mfma":
        if c.cls == "mfma" and p.w == c.srcc and not (set(p.w) & set(c.srcab)):
            return 4 * p.passes
        return 4 * p.passes + 24
    if p.cls == "ds": return 130
    if p.cls == "vmem": return 700
    if p.cls == "smem": return 900
    return max(_issue(p), 4 * (_need(p, c) + 1))

VM_GAP = 64
def _sched_region(ins):
    n = len(ins)
    if n <= 2:
        return ins
    rw = [_rw(i) for i in ins]
    preds = [dict() for _ in range(n)]
    lastw, readers = {}, {}
    for k, (r, w) in enumerate(rw):
        for x in r:
            if x in lastw:
                j = lastw[x]
                kind = "raw" if x[0] in ("v", "a", "s", "vcc", "m0") else "ord"
                preds[k][j] = max(preds[k].get(j, 0), _lat(ins[j], ins[k], kind))
        for x in w:
            if x in lastw:
                j = lastw[x]
                kind = "raw" if (x[0] in ("v", "a", "s") and ins[j].cls in ("mfma", "ds", "vmem", "smem") and not (ins[k].cls == "mfma" and ins[j].w == ins[k].srcc)) else "ord"
                preds[k][j] = max(preds[k].get(j, 0), _lat(ins[j], ins[k], kind))
            for j in readers.get(x, ()):
                if j != k:
                    preds[k][j] = max(preds[k].get(j, 0), _lat(ins[j], ins[k], "ord"))
        for x in r:
            readers.setdefault(x, []).append(k)
        for x in w:
            lastw[x] = k
            readers[x] = []
    succs = [[] for _ in range(n)]
    for k in range(n):
        for j, l in preds[k].items():
            succs[j].append((k, l))
    prio = [0.0] * n
    for k in range(n - 1, -1, -1):
        prio[k] = _issue(ins[k]) + max((l + prio[s] - _issue(ins[k]) for s, l in succs[k]), default=0)
    slow = [i.cls == "dot" or (i.op.startswith("v_pk_") and i.op.endswith(("f32", "b32"))) for i in ins]
    feeds_vm = [i.cls == "vmem" for i in ins]
    for k in range(n - 1, -1, -1):
        if ins[k].cls == "salu" and any(feeds_vm[s] for s, _ in succs[k]):
            feeds_vm[k] = True
    npred = [len(p) for p in preds]
    ready_t = [0.0] * n
    avail = [k for k in range(n) if npred[k] == 0]
    t, pipe_free, vm_free = 0.0, 0.0, 0.0
    order = []
    while avail:
        def start(k):
            s = max(t, ready_t[k])
            if ins[k].cls == "mfma":
                s = max(s, pipe_free)
            if ins[k].cls == "vmem":
                s = max(s, vm_free)
            if slow[k]:
                s = max(s, pipe_free + 12 if pipe_free else 0)
            return s
        k = min(avail, key=lambda k: (start(k) - t > 2.0, start(k) if start(k) - t > 2.0 else 0, not feeds_vm[k], -prio[k], k))
        s = start(k)
        avail.remove(k)
        order.append(k)
        t = s + _issue(ins[k])
        if ins[k].cls == "mfma":
            pipe_free = s + 4 * ins[k].passes
        if ins[k].cls == "vmem":
            vm_free = s + (VM_GAP if ins[k].op.endswith("x4") else VM_GAP / 2)
        for c, l in succs[k]:
            ready_t[c] = max(ready_t[c], s + l)
            npred[c] -= 1
            if npred[c] == 0:
                avail.append(c)
    assert len(order) == n
    _sched_region.last_t = t
    return [ins[k] for k in order]

def schedule(prog, verbose=None):
    out = Prog()
    cur = []
    def flush():
        if cur:
            out.items.extend(_sched_region(list(cur)))
            if verbose and len(cur) > 2:
                import sys
                print(f"  [{verbose}] region of {len(cur)} instrs: est {_sched_region.last_t:.0f} cycles", file=sys.stderr)
            cur.clear()
    for it in prog.items:
        if isinstance(it, tuple) or it.cls in ("ctl", "label"):
            flush(); out.items.append(it)
        else:
            cur.append(it)
    flush()
    return out

def code_prefetch(p, first, last, vt, vd, sp=60):
    Prog._lab = getattr(Prog, "_lab", 0) + 1
    lab = f"PF{Prog._lab}"
    p(f"s_getpc_b64 s[{sp}:{sp+1}]")
    p(f"{lab}:")
    p(f"""s_add_u32 s{sp}, s{sp}, {first}-{lab}
          s_addc_u32 s{sp+1}, s{sp+1}, 0
          v_lshlrev_b32 v{vt}, 7, v0
          v_min_u32 v{vt}, {last}-{first}, v{vt}
          global_load_dword v{vd}, v{vt}, s[{sp}:{sp+1}]""")
```

```python
from dsl import *
from layout import *
from common import *

LROW = 2816

def k1():
    head = Prog()
    head("""s_cmp_ge_u32 s2, 256
            s_cbranch_scc1 K1_END""")
    p = Prog()
    V = Alloc(1, 256)
    p.stamp(0)
    code_prefetch(p, "K1_MAIN", "km_kernel", 254, 255)
    p("K1_MAIN:")
    p("""s_load_dwordx4 s[4:7], s[0:1], 0
         s_load_dwordx2 s[8:9], s[0:1], 16
         s_load_dwordx2 s[10:11], s[0:1], 80""")
    vc, vq, vl, vt = V.get(), V.get(), V.get(), V.get()
    vxo, vwo = V.get(), V.get()
    p(f"""v_and_b32 v{vc}, 15, v0
          v_bfe_u32 v{vq}, v0, 4, 2
          v_and_b32 v{vl}, 63, v0
          v_lshrrev_b32 v{vt}, 6, v0
          v_readfirstlane_b32 s3, v{vt}
          v_mul_u32_u24 v{vxo}, 320, v{vq}
          v_lshl_add_u32 v{vxo}, v{vc}, 2, v{vxo}
          v_lshlrev_b32 v{vwo}, 1, v{vl}
          s_and_b32 s28, s2, 7
          s_lshr_b32 s29, s2, 3
          s_lshl_b32 s28, s28, 3
          s_lshl_b32 s30, s3, 1
          s_add_u32 s28, s28, s30
          s_lshl_b32 s28, s28, 5
          s_add_u32 s28, s28, s29
          s_mul_i32 s28, s28, 1280
          s_add_u32 s29, s28, {32*1280}
          s_lshr_b32 s31, s2, 2
          s_and_b32 s32, s2, 3
          s_lshl_b32 s32, s32, 3
          s_add_u32 s32, s32, s30
          s_lshl_b32 s32, s32, 6
          s_add_u32 s31, s31, s32
          s_mul_i32 s31, s31, 642
          s_add_u32 s31, s31, 2
          s_add_u32 s32, s31, {64*642}""")
    srd(p, 12, 4, S * D * 2)
    p.stamp(1)
    L = [V.get(5), V.get(5)]
    for rho in range(2):
        for j in range(5):
            p(f"buffer_load_dword v{L[rho]+j}, v{vxo}, s[12:15], s{28+rho} offen offset:{64*j}")
    srd(p, 16, 6, S * 321 * 2)
    srd(p, 20, 8, S * 321 * 2)
    WR = [V.get(5), V.get(5)]; WI = [V.get(5), V.get(5)]
    for rho in range(2):
        for j in range(5):
            p(f"buffer_load_ushort v{WR[rho]+j}, v{vwo}, s[16:19], s{31+rho} offen offset:{128*j}")
            p(f"buffer_load_ushort v{WI[rho]+j}, v{vwo}, s[20:23], s{31+rho} offen offset:{128*j}")
    srd(p, 24, 10, WS_END)
    fc, f5q, f8q, t0, t1, t2, t3 = (V.get() for _ in range(7))
    B1re, B1im = V.get(4, 4), V.get(4, 4)
    twc, tws = V.get(8, 2), V.get(8, 2)
    A2P, A2Q = V.get(8, 4), V.get(8, 4)
    tc, ts = V.get(5), V.get(5)
    p(f"""v_cvt_f32_u32 v{fc}, v{vc}
          v_cvt_f32_u32 v{f8q}, v{vq}
          v_mul_f32 v{f5q}, 0.25, v{f8q}
          v_mul_f32 v{f8q}, {f32(8.0)}, v{f8q}
          v_mul_f32 v{f5q}, v{f5q}, v{fc}
          v_mul_f32 v{f8q}, v{f8q}, v{fc}""".replace("0.25", f32(0.25)))
    for j in range(5):
        p(f"""v_fmamk_f32 v{t0}, v{fc}, {f32(j/20)}, v{f5q}
              v_cos_f32 v{tc+j}, v{t0}
              v_sin_f32 v{ts+j}, v{t0}""")
    p(f"""v_cvt_pk_bf16_f32 v{B1re}, v{tc}, v{tc+1}
          v_cvt_pk_bf16_f32 v{B1re+1}, v{tc+2}, v{tc+3}
          v_cvt_pk_bf16_f32 v{B1re+2}, v{tc+4}, 0
          v_mov_b32 v{B1re+3}, 0
          v_cvt_pk_bf16_f32 v{B1im}, -v{ts}, -v{ts+1}
          v_cvt_pk_bf16_f32 v{B1im+1}, -v{ts+2}, -v{ts+3}
          v_cvt_pk_bf16_f32 v{B1im+2}, -v{ts+4}, 0
          v_mov_b32 v{B1im+3}, 0""")
    for t in range(2):
        for r in range(4):
            m = 2 * r + t
            p(f"""v_fmamk_f32 v{t0}, v{fc}, {f32(float(m))}, v{f8q}
                  v_mul_f32 v{t1}, {f32(1/640)}, v{t0}
                  v_mul_f32 v{t0}, {f32(1/32)}, v{t0}
                  v_cos_f32 v{twc+4*t+r}, v{t1}
                  v_sin_f32 v{tws+4*t+r}, v{t1}
                  v_cos_f32 v{t2}, v{t0}
                  v_sin_f32 v{t3}, v{t0}
                  v_cvt_pk_bf16_f32 v{A2P+4*t+r}, v{t2}, v{t3}
                  v_cvt_pk_bf16_f32 v{A2Q+4*t+r}, -v{t3}, v{t2}""")
    va0, va1, vaw, vgo, vis0, vhalf = (V.get() for _ in range(6))
    vrd = V.get(5)
    p(f"""s_mul_i32 s33, s3, {2*LROW}
          s_lshr_b32 s34, s3, 1
          s_lshl_b32 s34, s34, 6
          s_add_u32 s33, s33, s34
          v_add_u32 v{va0}, s33, v{vxo}
          s_add_u32 s34, s33, {260*4}
          v_sub_u32 v{va1}, s34, v{vxo}
          s_add_u32 s34, s33, {321*4}
          v_lshl_add_u32 v{vaw}, v{vl}, 2, s34
          v_lshlrev_b32 v{vgo}, 4, v0
          s_mul_i32 s35, s2, 20480
          s_mov_b32 s36, 0x05040100
          s_mov_b32 s37, 0x07060302
          s_mov_b32 s38, 0x3f803f80
          v_cmp_eq_u32 vcc, 0, v{vc}
          v_mov_b32 v{t0}, {f32(-20.0/640)}
          v_cndmask_b32 v{vis0}, 0, v{t0}, vcc""")
    p(f"""v_cmp_eq_u32 vcc, 0, v{vl}
          v_cndmask_b32 v{vhalf}, 1.0, 0.5, vcc
          v_and_b32 v{t0}, 1, v0
          v_mul_u32_u24 v{t0}, {4*LROW+64}, v{t0}
          v_bfe_u32 v{t1}, v0, 1, 1
          v_mul_u32_u24 v{t1}, 160, v{t1}
          v_add3_u32 v{t0}, v{t0}, v{t1}, 4
          v_lshrrev_b32 v{t1}, 2, v0""")
    for j in range(5):
        p(f"""v_add_u32 v{t2}, {64*j}, v{t1}
              v_mul_u32_u24 v{t3}, 1639, v{t2}
              v_lshrrev_b32 v{t3}, 16, v{t3}
              v_mul_u32_u24 v{t3}, 40, v{t3}
              v_add_u32 v{t2}, v{t2}, v{t3}
              v_lshl_add_u32 v{vrd+j}, v{t2}, 2, v{t0}""")
    p(f"""v_lshlrev_b32 v{t0}, 2, v0
          v_mov_b32 v{t1}, 0x80000000
          v_cmp_gt_u32 vcc, 64, v0
          v_cndmask_b32 v{t0}, v{t1}, v{t0}, vcc
          v_mov_b32 v{t1}, 0
          s_lshl_b32 s39, s2, 8
          s_add_u32 s39, s39, {CS}
          buffer_store_dword v{t1}, v{t0}, s[24:27], s39 offen sc1""")
    A = [[V.get(4, 4), V.get(4, 4)] for _ in range(2)]
    D1 = [[[V.get(4, 4) for _ in range(2)] for _ in range(2)] for _ in range(2)]
    s1 = [V.get(), V.get()]; s2 = [V.get(), V.get()]
    for rho in range(2):
        p(f"v_mov_b32 v{A[rho][0]+3}, 0\nv_mov_b32 v{A[rho][1]+3}, 0\nv_mov_b32 v{s1[rho]}, 0\nv_mov_b32 v{s2[rho]}, 0")
    p.stamp(2)
    outer = p
    p = Prog()
    for rho in range(2):
        l = L[rho]
        p(f"""v_perm_b32 v{A[rho][0]}, v{l+1}, v{l}, s36
              v_perm_b32 v{A[rho][0]+1}, v{l+3}, v{l+2}, s36
              v_and_b32 v{A[rho][0]+2}, 0xffff, v{l+4}
              v_perm_b32 v{A[rho][1]}, v{l+1}, v{l}, s37
              v_perm_b32 v{A[rho][1]+1}, v{l+3}, v{l+2}, s37
              v_lshrrev_b32 v{A[rho][1]+2}, 16, v{l+4}""")
    ms, st = Prog(), Prog()
    for rho in range(2):
        for t in range(2):
            ms(f"v_mfma_f32_16x16x32_bf16 {vr(D1[rho][t][0],4)}, {vr(A[rho][t],4)}, {vr(B1re,4)}, 0")
            ms(f"v_mfma_f32_16x16x32_bf16 {vr(D1[rho][t][1],4)}, {vr(A[rho][t],4)}, {vr(B1im,4)}, 0")
    for j in range(5):
        for rho in range(2):
            st(f"v_dot2c_f32_bf16 v{s1[rho]}, s38, v{L[rho]+j}")
            st(f"v_dot2c_f32_bf16 v{s2[rho]}, v{L[rho]+j}, v{L[rho]+j}")
    p.extend(ms); p.extend(st)
    p(f"""v_permlane16_swap_b32 v{s1[0]}, v{s2[0]}
          v_permlane16_swap_b32 v{s1[1]}, v{s2[1]}
          v_add_f32 v{s1[0]}, v{s1[0]}, v{s2[0]}
          v_add_f32 v{s1[1]}, v{s1[1]}, v{s2[1]}
          v_permlane32_swap_b32 v{s1[0]}, v{s1[1]}
          v_add_f32 v{s1[0]}, v{s1[0]}, v{s1[1]}""")
    fil = Prog()
    for rho in range(2):
        for j in range(5):
            fil(f"v_lshl_or_b32 v{WR[rho]+j}, v{WI[rho]+j}, 16, v{WR[rho]+j}")
    red = Prog()
    for sh in (8, 4, 2, 1):
        red(f"v_add_f32_dpp v{s1[0]}, v{s1[0]}, v{s1[0]} row_ror:{sh} row_mask:0xf bank_mask:0xf")
    p.extend(red)
    p(f"""v_readlane_b32 s40, v{s1[0]}, 0
          v_readlane_b32 s41, v{s1[0]}, 16
          v_readlane_b32 s42, v{s1[0]}, 32
          v_readlane_b32 s43, v{s1[0]}, 48""")
    nmu = [V.get(2, 2), V.get(2, 2)]; rs = [V.get(2, 2), V.get(2, 2)]
    for rho in range(2):
        p(f"v_mul_f32 v{nmu[rho]}, s{40+2*rho}, v{vis0}")
    for rho in range(2):
        p(f"""v_mov_b32 v{t0+rho}, {f32(1/640)}
              v_mul_f32 v{t2+rho}, s{40+2*rho}, v{t0+rho}
              v_mul_f32 v{t0+rho}, s{41+2*rho}, v{t0+rho}
              v_fma_f32 v{t0+rho}, -v{t2+rho}, v{t2+rho}, v{t0+rho}
              v_max_f32 v{t0+rho}, 0, v{t0+rho}
              v_add_f32 v{t0+rho}, {f32(1e-5)}, v{t0+rho}
              v_rsq_f32 v{rs[rho]}, v{t0+rho}""")
    B2 = [[V.get(4, 4), V.get(4, 4)] for _ in range(2)]
    TRI = [(V.get(4, 2), V.get(4, 2)) for _ in range(2)]
    U = A
    Uim = [[V.get(4, 4), V.get(4, 4)] for _ in range(2)]
    for rho in range(2):
        for t in range(2):
            a, b = D1[rho][t]
            tr, ti = TRI[t]
            for h in range(2):
                c_, s_ = twc + 4*t + 2*h, tws + 4*t + 2*h
                p(f"""v_pk_fma_f32 {vr(tr+2*h,2)}, {vr(b+2*h,2)}, {vr(s_,2)}, {vr(nmu[rho],2)} op_sel_hi:[1,1,0]
                      v_pk_mul_f32 {vr(ti+2*h,2)}, {vr(b+2*h,2)}, {vr(c_,2)}
                      v_pk_fma_f32 {vr(tr+2*h,2)}, {vr(a+2*h,2)}, {vr(c_,2)}, {vr(tr+2*h,2)}
                      v_pk_fma_f32 {vr(ti+2*h,2)}, {vr(a+2*h,2)}, {vr(s_,2)}, {vr(ti+2*h,2)} neg_lo:[1,0,0] neg_hi:[1,0,0]""")
            for r in range(4):
                p(f"v_cvt_pk_bf16_f32 v{B2[rho][t]+r}, v{tr+r}, v{ti+r}")
        for t in range(2):
            p(f"v_mfma_f32_16x16x32_bf16 {vr(U[rho][t],4)}, {vr(A2P+4*t,4)}, {vr(B2[rho][t],4)}, 0")
            p(f"v_mfma_f32_16x16x32_bf16 {vr(Uim[rho][t],4)}, {vr(A2Q+4*t,4)}, {vr(B2[rho][t],4)}, 0")
    p.extend(fil)
    for rho in range(2):
        for j in range(5):
            p(f"ds_write_b32 v{vaw}, v{WR[rho]+j} offset:{rho*LROW + 256*j}")
    p("s_mov_b32 s44, 0x07ff07ff\ns_mov_b32 s45, 0x07ff07ff")
    for rho in range(2):
        o = D1[rho]
        for part, uu in ((0, U[rho]), (1, Uim[rho])):
            for h in range(2):
                p(f"""v_pk_mul_f32 {vr(uu[0]+2*h,2)}, {vr(uu[0]+2*h,2)}, {vr(rs[rho],2)} op_sel_hi:[1,0]
                      v_pk_fma_f32 {vr(o[0][part]+2*h,2)}, {vr(uu[1]+2*h,2)}, {vr(rs[rho],2)}, {vr(uu[0]+2*h,2)} op_sel_hi:[1,0,1]
                      v_pk_fma_f32 {vr(o[1][part]+2*h,2)}, {vr(uu[1]+2*h,2)}, {vr(rs[rho],2)}, {vr(uu[0]+2*h,2)} op_sel_hi:[1,0,1] neg_lo:[1,0,0] neg_hi:[1,0,0]""")
        p(f"v_mul_f32 v{o[1][0]}, v{o[1][0]}, v{vhalf}")
        for r in range(4):
            p(f"v_cvt_pk_bf16_f32 v{B2[rho][0]+r}, v{o[0][0]+r}, v{o[0][1]+r}")
            p(f"v_cvt_pk_bf16_f32 v{B2[rho][1]+r}, v{o[1][0]+r}, -v{o[1][1]+r}")
    outer.extend(schedule(p, "k1"))
    p = outer
    p.stamp(3)
    p("s_mov_b64 exec, s[44:45]")
    for rho in range(2):
        for r in range(4):
            p(f"ds_write_b32 v{va0}, v{B2[rho][0]+r} offset:{rho*LROW + 80*r}")
            p(f"ds_write_b32 v{va1}, v{B2[rho][1]+r} offset:{rho*LROW + 80*(3-r)}")
    p("s_mov_b64 exec, -1\ns_waitcnt lgkmcnt(0)\ns_barrier")
    p.stamp(4)
    O = V.get(20, 4)
    for j in range(5):
        p(f"ds_read2st64_b32 {vr(O+4*j,2)}, v{vrd+j} offset0:0 offset1:11")
        p(f"ds_read2st64_b32 {vr(O+4*j+2,2)}, v{vrd+j} offset0:22 offset1:33")
    for j in range(5):
        p(f"buffer_store_dwordx4 {vr(O+4*j,4)}, v{vgo}, s[24:27], s35 offen sc1")
        if j < 4:
            p("s_add_u32 s35, s35, 4096")
    p.stamps_out(0, 5)
    p("K1_END:")
    return [head, p], 256, 8 * LROW
```

```python
from dsl import *
from layout import *
from common import *
from relayout import relayout

def k2():
    LX, LW, LE = 0, 16384, 32768
    head = Prog()
    head("""s_cmp_ge_u32 s2, 416
            s_cbranch_scc1 K2_END
            s_cmp_ge_u32 s2, 160
            s_cbranch_scc1 K2_RELAYOUT""")
    p = Prog()
    V = Alloc(1, 256)
    p.stamp(0)
    code_prefetch(p, "km_kernel", "KM_END", 254, 255)
    p("s_load_dwordx2 s[10:11], s[0:1], 80")
    vc, vq, vl, t0, t1, t2, t3, vxo, vwo = (V.get() for _ in range(9))
    p(f"""v_and_b32 v{vc}, 15, v0
          v_bfe_u32 v{vq}, v0, 4, 2
          v_and_b32 v{vl}, 63, v0
          v_lshrrev_b32 v{t0}, 6, v0
          v_readfirstlane_b32 s3, v{t0}
          v_and_b32 v{t0}, 3, v0
          v_xor_b32 v{t0}, v{t0}, v{vq}
          v_lshlrev_b32 v{t0}, 4, v{t0}
          v_lshrrev_b32 v{t1}, 2, v{vl}
          s_mov_b32 s28, {16*20480}
          v_mad_u32_u24 v{vxo}, v{t1}, s28, v{t0}
          v_and_b32 v{t1}, 3, v{t1}
          v_lshl_add_u32 v{t1}, v{vq}, 3, v{t1}
          s_mov_b32 s28, {4*20480}
          v_mad_u32_u24 v{vwo}, v{t1}, s28, v{t0}
          s_and_b32 s28, s2, 7
          s_mul_i32 s28, s28, 20
          s_lshr_b32 s29, s2, 3
          s_add_u32 s28, s28, s29
          s_lshl_b32 s29, s28, 6
          s_mul_i32 s30, s3, {4*20480}
          s_add_u32 s30, s30, s29
          s_lshr_b32 s31, s3, 1
          s_and_b32 s32, s3, 1
          s_lshl_b32 s33, s31, 5
          s_lshl_b32 s34, s32, 2
          s_add_u32 s33, s33, s34
          s_mul_i32 s34, s33, {4*20480}
          s_add_u32 s34, s34, s29
          s_add_u32 s34, s34, 10240
          s_lshl_b32 s35, s3, 12""")
    P64, Q64 = V.get(16, 4), V.get(16, 4)
    P32, Q32 = V.get(16, 4), V.get(16, 4)
    fc_, fs_, ic_, is_ = V.get(8, 2), V.get(8, 2), V.get(8, 2), V.get(8, 2)
    fk, fq8, fce, fb = (V.get() for _ in range(4))
    cst = Prog()
    cst(f"""v_lshrrev_b32 v{t0}, 2, v{vc}
            v_and_b32 v{t1}, 3, v{vc}
            v_lshl_add_u32 v{t0}, v{t0}, 3, v{t1}
            v_add_u32 v{t0}, s33, v{t0}
            v_cvt_f32_u32 v{fk}, v{t0}
            v_lshlrev_b32 v{t0}, 3, v{vq}
            v_cvt_f32_u32 v{fq8}, v{t0}
            v_mul_f32 v{fk}, {f32(1/64)}, v{fk}
            v_mul_f32 v{fb}, v{fk}, v{fq8}""")
    for ks in range(4):
        for i in range(4):
            n = 32 * (ks >> 1) + 4 * (ks & 1) + i
            cst(f"""v_fmamk_f32 v{t0}, v{fk}, {f32(float(n))}, v{fb}
                    v_cos_f32 v{t2}, v{t0}
                    v_sin_f32 v{t3}, v{t0}
                    v_cvt_pk_bf16_f32 v{P64+4*ks+i}, v{t2}, v{t3}
                    v_cvt_pk_bf16_f32 v{Q64+4*ks+i}, -v{t3}, v{t2}""")
    cst2 = Prog()
    cst2(f"""v_mul_f32 v{fk}, {f32(1/32)}, v{fk}
             v_mul_f32 v{fb}, {f32(1/32)}, v{fb}""")
    for mt in range(2):
        for r in range(4):
            cst2(f"""v_fmamk_f32 v{t0}, v{fk}, {f32(float(2*r+mt))}, v{fb}
                     v_cos_f32 v{fc_+4*mt+r}, v{t0}
                     v_sin_f32 v{fs_+4*mt+r}, v{t0}""")
    for a in range(2):
        cst2(f"""v_lshl_add_u32 v{t0}, v{vc}, 1, {a}
                 v_cvt_f32_u32 v{fce}, v{t0}
                 v_mul_f32 v{fce}, {f32(1/32)}, v{fce}
                 v_mul_f32 v{fb}, v{fce}, v{fq8}""")
        for b in range(2):
            for r in range(4):
                cst2(f"""v_fmamk_f32 v{t0}, v{fce}, {f32(float(2*r+b))}, v{fb}
                         v_cos_f32 v{t2}, v{t0}
                         v_sin_f32 v{t3}, v{t0}
                         v_cvt_pk_bf16_f32 v{P32+(2*a+b)*4+r}, v{t2}, v{t3}
                         v_cvt_pk_bf16_f32 v{Q32+(2*a+b)*4+r}, -v{t3}, v{t2}""")
        cst2(f"""v_cvt_f32_u32 v{t1}, s33
                 v_add_f32 v{t1}, v{t1}, v{fq8}
                 v_mul_f32 v{fce}, {f32(1/64)}, v{fce}
                 v_mul_f32 v{fb}, v{fce}, v{t1}""")
        for r in range(4):
            cst2(f"""v_fmamk_f32 v{t0}, v{fce}, {f32(float(r))}, v{fb}
                     v_cos_f32 v{ic_+4*a+r}, v{t0}
                     v_sin_f32 v{is_+4*a+r}, v{t0}""")
    p.extend(cst)
    srd(p, 24, 10, WS_END)
    p.stamp(1)
    for it in range(4):
        p(f"s_add_u32 m0, s35, {LX + 1024*it}")
        p(f"buffer_load_dwordx4 v{vxo}, s[24:27], s30 offen lds", tag="x")
        if it < 3:
            p("s_add_u32 s30, s30, 20480")
    for it in range(4):
        p(f"s_add_u32 m0, s35, {LW + 1024*it}")
        p(f"buffer_load_dwordx4 v{vwo}, s[24:27], s34 offen lds", tag="w")
        if it < 3:
            p("s_add_u32 s34, s34, 20480")
    p.extend(cst2)
    rd = V.get(4); rdw = V.get(4); vex, vexw, voo = V.get(), V.get(), V.get()
    p(f"v_lshrrev_b32 v{t0}, 2, v{vc}")
    for pc in range(4):
        p(f"""v_xor_b32 v{t1}, {pc}, v{t0}
              v_lshlrev_b32 v{t1}, 4, v{t1}
              v_lshl_add_u32 v{rd+pc}, v{vl}, 6, v{t1}
              v_add_u32 v{rdw+pc}, s35, v{rd+pc}""")
    p(f"""v_lshlrev_b32 v{vex}, 4, v{vl}
          s_lshl_b32 s36, s3, 11
          v_add_u32 v{vexw}, s36, v{vex}
          s_mov_b32 s36, {8*40960}
          s_mul_i32 s37, s28, 1639
          s_lshr_b32 s37, s37, 16
          s_mul_i32 s37, s37, 40
          s_sub_u32 s37, s28, s37
          s_and_b32 s37, s37, 15
          v_xor_b32 v{t0}, s37, v{vc}
          v_lshlrev_b32 v{t0}, 4, v{t0}
          v_mad_u32_u24 v{voo}, v{vq}, s36, v{t0}
          s_mul_i32 s40, s33, 40960
          s_lshl_b32 s36, s28, 8
          s_add_u32 s40, s40, s36
          s_add_u32 s40, s40, {YC}
          s_add_u32 s41, s40, 40960
          s_add_u32 s42, s40, {2*40960}
          s_add_u32 s43, s40, {3*40960}""")
    p.stamp(2)
    p.wait_tag("x")
    p("s_barrier")
    p.stamp(3)
    cols = []
    OUT = P32
    for col in range(2):
        A = V.get(32, 4)
        Dr, Di = V.get(8, 4), V.get(8, 4)
        B = V.get(8, 4)
        tr, ti = A + 24, A + 28
        Wr, Wi, Wraw = A, A + 8, A + 16
        ld, s1, tw, s2, wm, i1, ti_, ex, i2, outp, wun = (Prog() for _ in range(11))
        for mt in range(2):
            for ks in range(4):
                ld(f"ds_read_b128 {vr(A+(mt*4+ks)*4,4)}, v{rd+col*2+(ks&1)} offset:{LX+(mt*2+(ks>>1))*4096}")
        for ks in range(4):
            for mt in range(2):
                a = vr(A+(mt*4+ks)*4, 4)
                s1(f"{MF} {vr(Dr+4*mt,4)}, {a}, {vr(P64+4*ks,4)}, {vr(Dr+4*mt,4) if ks else 0}")
                s1(f"{MF} {vr(Di+4*mt,4)}, {a}, {vr(Q64+4*ks,4)}, {vr(Di+4*mt,4) if ks else 0}")
        for mt in range(2):
            cmul(tw, Dr+4*mt, Di+4*mt, fc_+4*mt, fs_+4*mt, tr, ti, -1)
            for r in range(4):
                tw(f"v_cvt_pk_bf16_f32 v{B+4*mt+r}, v{tr+r}, v{ti+r}")
        for mt in range(2):
            for m2 in range(2):
                s2(f"{MF} {vr(Dr+4*m2,4)}, {vr(P32+(2*m2+mt)*4,4)}, {vr(B+4*mt,4)}, {vr(Dr+4*m2,4) if mt else 0}")
                s2(f"{MF} {vr(Di+4*m2,4)}, {vr(Q32+(2*m2+mt)*4,4)}, {vr(B+4*mt,4)}, {vr(Di+4*m2,4) if mt else 0}")
        for half in range(2):
            wun(f"ds_read_b128 {vr(Wraw+4*half,4)}, v{rdw+col*2+half} offset:{LW}")
        for m2 in range(2):
            for r in range(4):
                wm(f"v_lshlrev_b32 v{Wr+4*m2+r}, 16, v{Wraw+2*r+m2}")
                wm(f"v_and_b32 v{Wi+4*m2+r}, 0xffff0000, v{Wraw+2*r+m2}")
        for m2 in range(2):
            cmul(wm, Dr+4*m2, Di+4*m2, Wr+4*m2, Wi+4*m2, tr, ti, +1)
            for r in range(4):
                wm(f"v_cvt_pk_bf16_f32 v{B+4*m2+r}, v{ti+r}, v{tr+r}")
        for m2 in range(2):
            for nt in range(2):
                i1(f"{MF} {vr(Dr+4*nt,4)}, {vr(B+4*m2,4)}, {vr(Q32+(2*nt+m2)*4,4)}, {vr(Dr+4*nt,4) if m2 else 0}")
                i1(f"{MF} {vr(Di+4*nt,4)}, {vr(B+4*m2,4)}, {vr(P32+(2*nt+m2)*4,4)}, {vr(Di+4*nt,4) if m2 else 0}")
        for nt in range(2):
            cmul(ti_, Dr+4*nt, Di+4*nt, ic_+4*nt, is_+4*nt, tr, ti, +1)
            for r in range(4):
                ti_(f"v_cvt_pk_bf16_f32 v{B+4*nt+r}, v{ti+r}, v{tr+r}")
            ti_(f"ds_write_b128 v{vexw}, {vr(B+4*nt,4)} offset:{LE+col*8192+nt*1024}")
        for w2 in range(4):
            for nt in range(2):
                ex(f"ds_read_b128 {vr(A+(w2*2+nt)*4,4)}, v{vex} offset:{LE+col*8192+w2*2048+nt*1024}")
        for w2 in range(4):
            for nt in range(2):
                e = vr(A+(w2*2+nt)*4, 4)
                i2(f"{MF} {vr(Dr+4*nt,4)}, {vr(Q64+4*w2,4)}, {e}, {vr(Dr+4*nt,4) if w2 else 0}")
                i2(f"{MF} {vr(Di+4*nt,4)}, {vr(P64+4*w2,4)}, {e}, {vr(Di+4*nt,4) if w2 else 0}")
        for r in range(4):
            outp(f"v_cvt_pk_bf16_f32 v{OUT+4*r+col}, v{Dr+r}, v{Di+r}")
            outp(f"v_cvt_pk_bf16_f32 v{OUT+4*r+2+col}, v{Dr+4+r}, v{Di+4+r}")
        cols.append(dict(ld=ld, s1=s1, tw=tw, s2=s2, wm=wm, i1=i1, ti=ti_, ex=ex, i2=i2, out=outp, wun=wun))
    a, b = cols
    r1 = Prog()
    r1.extend(a["ld"]); r1.extend(b["ld"]); r1.extend(a["s1"])
    p.extend(schedule(r1, "k2 fwd"))
    p.stamp(4)
    p.wait_tag("w")
    p.stamp(5)
    r2 = Prog()
    r2.extend(b["s1"])
    for k in ("wun", "tw", "s2", "wm", "i1", "ti"):
        r2.extend(a[k]); r2.extend(b[k])
    p.extend(schedule(r2, "k2 mid"))
    p("s_waitcnt lgkmcnt(0)\ns_barrier")
    p.stamp(6)
    r3 = Prog()
    for k in ("ex", "i2", "out"):
        r3.extend(a[k]); r3.extend(b[k])
    for r in range(4):
        r3(f"buffer_store_dwordx4 {vr(OUT+4*r,4)}, v{voo}, s[24:27], s{40+r} offen sc1")
    p.extend(schedule(r3, "k2 inv"))
    p.stamp(7)
    p.stamps_out(1, 8)
    p("s_endpgm")
    return [head, p] + relayout(160, 'K2_END'), 256, 49152
```

```python
from common import *

import os
EXP = os.environ.get('EXP', '').split(',')
SLOT = 20480
SLOT_ORDER = (4, 5, 6, 7, 2, 3, 0, 1)
def slot_of(c):
    return SLOT_ORDER[c % 8] * SLOT

def km():
    LY, LA, LR, LS = 0, 2 * SLOT, 0, SLOT
    head = Prog()
    head("s_cmp_ge_u32 s2, 256\ns_cbranch_scc1 KM_END")
    p = Prog()
    V = Alloc(1, 256)
    AW, AX = 0, 200
    p.stamp(0)
    p("""s_load_dwordx2 s[4:5], s[0:1], 0
         s_load_dwordx2 s[6:7], s[0:1], 64
         s_load_dwordx2 s[10:11], s[0:1], 80""")
    vc, vq, vl16, t0, t1, t2, t3, vo2, vone, vpf50, vpf30, vl128, vhr = (V.get() for _ in range(13))
    junk_n = [0]
    def junk():
        junk_n[0] += 1
        return f'a{240 + junk_n[0] % 16}'
    vb = [vl16, V.get(), V.get()]
    RESID = V.get(20, 4)
    base_mark = V.mark()
    vl, vx1, vx2 = (V.get() for _ in range(3))
    p(f"""v_and_b32 v{vc}, 15, v0
          v_bfe_u32 v{vq}, v0, 4, 2
          v_and_b32 v{vl}, 63, v0
          v_lshrrev_b32 v{t0}, 6, v0
          v_readfirstlane_b32 s3, v{t0}
          v_lshlrev_b32 v{vl16}, 4, v{vl}
          s_and_b32 s9, s2, 7
          s_lshr_b32 s8, s2, 3
          s_lshl_b32 s28, s9, 3
          s_lshr_b32 s29, s8, 2
          s_add_u32 s28, s28, s29
          s_and_b32 s29, s8, 3
          s_and_b32 s30, s3, 1
          s_lshr_b32 s31, s3, 1
          s_xor_b32 s32, s30, s31
          s_mul_i32 s34, s3, 10240
          s_mul_i32 s35, s28, 40960
          s_add_u32 s36, s35, s34
          s_add_u32 s37, s35, s34
          s_add_u32 s36, s36, {YC}
          v_lshrrev_b32 v{t0}, 1, v{vq}
          v_and_b32 v{t1}, 1, v{vq}
          v_lshlrev_b32 v{t1}, 4, v{t1}
          v_lshl_add_u32 v{t2}, v{vc}, 5, v{t1}
          v_lshl_add_u32 v{vx1}, v{t0}, 9, v{t2}
          v_lshrrev_b32 v{t2}, 3, v{vc}
          v_lshl_add_u32 v{t2}, v{t2}, 2, v{t0}
          v_mul_u32_u24 v{t2}, 1280, v{t2}
          v_and_b32 v{t3}, 7, v{vc}
          v_lshl_add_u32 v{t3}, v{t3}, 5, v{t1}
          v_add_u32 v{vx2}, v{t2}, v{t3}
          v_lshl_add_u32 v{t0}, v{t0}, 4, v{vc}
          v_lshlrev_b32 v{vo2}, 4, v{t0}
          v_add_u32 v{vb[1]}, 0x10000, v{vl16}
          v_add_u32 v{vb[2]}, 0x20000, v{vl16}
          v_mov_b32 v{vone}, 1
          v_lshlrev_b32 v{vl128}, 7, v{vl}
          v_min_u32 v{vpf50}, {49*128}, v{vl128}
          v_min_u32 v{vpf30}, {29*128}, v{vl128}
          s_lshl_b32 s15, s8, 2
          s_add_u32 s69, s15, s3
          s_lshl_b32 s38, s29, 1
          s_add_u32 s38, s38, s30
          s_mul_i32 s39, s38, 102400
          s_mul_i32 s33, s31, 51200
          s_add_u32 s39, s39, s33
          s_add_u32 s39, s39, {W1P}
          s_mul_i32 s19, s3, 5120
          s_and_b32 s33, s8, 7
          s_mul_i32 s16, s33, 102400
          s_add_u32 s16, s16, s19
          s_add_u32 s16, s16, {W2P}
          s_mul_i32 s18, s33, 245760
          s_add_u32 s18, s18, s19
          s_add_u32 s18, s18, {W4P}
          s_and_b32 s33, s8, 15
          s_mul_i32 s17, s33, 122880
          s_add_u32 s17, s17, s19
          s_add_u32 s17, s17, {W3P}""")
    def wchunk(pr, c):
        if "nochunk" in EXP:
            return
        sreg = 16 if c < 5 else (17 if c < 11 else 18)
        pr(f"s_add_u32 m0, s19, {slot_of(c)}")
        for i in range(4):
            pr(f"buffer_load_dwordx4 v{vl16}, s[24:27], s{sreg} offen offset:{i*1024} lds", tag=f"w{c}")
        pr(f"s_add_u32 m0, s19, {slot_of(c)+4096}\ns_add_u32 s20, s{sreg}, 4096")
        pr(f"buffer_load_dwordx4 v{vl16}, s[24:27], s20 offen lds", tag=f"w{c}")
        pr(f"s_add_u32 s{sreg}, s{sreg}, {SLOT}")
    def l2pf(pr, base, nbytes, piece, npieces):
        if "nopf" in EXP:
            return
        share = nbytes // 128
        lines = share // 128 // npieces
        pr(f"""s_mul_i32 s68, s69, {share}
               s_add_u32 s68, s68, {base + piece * lines * 128}
               buffer_load_dword {junk()}, v{vpf50 if lines == 50 else vpf30}, s[24:27], s68 offen""")
        assert lines in (50, 30)
    SAr, SAi = V.get(4, 4), V.get(4, 4)
    T0c, T0s, T1c, T1s = (V.get(4) for _ in range(4))
    B0 = [V.get(4, 4), V.get(4, 4)]
    B02l, B02h = V.get(4, 4), V.get(4, 4)
    B1l = [V.get(4, 4), V.get(4, 4)]; B1h = [V.get(4, 4), V.get(4, 4)]
    B12 = V.get(4, 4)
    Il, Ih = V.get(4, 4), V.get(4, 4)
    ry = RESID
    wa = V.get(8); wa2 = V.get(4)
    ra = [V.get(8), V.get(8)]
    mk = V.mark()
    fc, fq4, fq1, sg, a0, ad, k1_, k2_ = (V.get() for _ in range(8))
    u = [V.get() for _ in range(8)]
    KAP = 1.0 / (640 * 2048)
    p(f"""s_mov_b32 s50, -1
          s_mov_b32 s51, 0
          s_mov_b32 s52, 0x00ff00ff
          s_mov_b32 s53, 0x00ff00ff
          s_mov_b32 s54, 0x0000ffff
          s_mov_b32 s55, 0x0000ffff
          s_mov_b32 s56, 0xffff0000
          s_mov_b32 s57, 0xffff0000
          s_mov_b32 s58, 0x00ff00ff
          s_mov_b32 s59, 0xff00ff00
          v_cvt_f32_u32 v{fc}, v{vc}
          v_lshlrev_b32 v{t0}, 2, v{vq}
          v_cvt_f32_u32 v{fq4}, v{t0}
          v_and_b32 v{t0}, 4, v{t0}
          v_add_u32 v{t0}, 16, v{t0}
          v_cvt_f32_u32 v{fq1}, v{t0}
          v_cndmask_b32 v{sg}, -1.0, 1.0, s[50:51]
          v_mov_b32 v{t0}, {f32(3.0)}
          v_cndmask_b32 v{t0}, v{t0}, 0, s[50:51]
          v_add_f32 v{t0}, v{t0}, v{fq4}
          v_mul_f32 v{ad}, {f32(1/16)}, v{fc}
          v_mul_f32 v{a0}, v{t0}, v{ad}
          v_mul_f32 v{ad}, v{ad}, v{sg}""")
    c1 = Prog()
    for i in range(4):
        x0, x1, x2, x3 = u[4*(i&1):4*(i&1)+4]
        c1(f"""v_fmamk_f32 v{x0}, v{ad}, {f32(float(i))}, v{a0}
               v_cos_f32 v{x1}, v{x0}
               v_sin_f32 v{x2}, v{x0}
               v_mul_f32 v{x3}, v{sg}, v{x1}
               v_mul_f32 v{x0}, v{sg}, v{x2}
               v_cvt_pk_bf16_f32 v{SAr+i}, v{x1}, -v{x0}
               v_cvt_pk_bf16_f32 v{SAi+i}, v{x2}, v{x3}""")
    c1(f"""v_mov_b32 v{k2_}, {f32(2*KAP)}
           v_mov_b32 v{t0}, {f32(KAP)}
           v_cndmask_b32 v{k1_}, v{k2_}, v{t0}, s[56:57]
           v_cndmask_b32 v{sg}, v{k2_}, 0, s[56:57]
           v_mul_f32 v{ad}, {f32(1/640)}, v{fc}""")
    for (cc, ss, fq, first, rest) in ((T0c, T0s, fq4, k2_, k2_), (T1c, T1s, fq1, k1_, sg)):
        c1(f"v_mul_f32 v{a0}, v{ad}, v{fq}")
        for r in range(4):
            sc = first if r == 0 else rest
            x0 = u[r]
            c1(f"""v_fmamk_f32 v{x0}, v{ad}, {f32(float(r))}, v{a0}
                   v_cos_f32 v{cc+r}, v{x0}
                   v_sin_f32 v{ss+r}, v{x0}
                   v_mul_f32 v{cc+r}, v{sc}, v{cc+r}
                   v_mul_f32 v{ss+r}, v{sc}, v{ss+r}""")
    p.extend(schedule(c1))
    srd(p, 24, 10, WS_END)
    srd(p, 12, 4, S * D * 2)
    p.stamp(1)
    c2 = Prog()
    for n in range(10):
        if n % 4 == 0:
            c2(f"s_add_u32 m0, s34, {LY + 1024*n}")
        c2(f"buffer_load_dwordx4 v{vl16}, s[24:27], s36 offen offset:{(n%4)*1024} lds", tag="y")
        if n % 4 == 3:
            c2("s_add_u32 s36, s36, 4096")
    l2pf(c2, W1P, 819200, 0, 1)
    for row in (0, 4, 8, 1, 5, 2, 6, 9, 3, 7):
        if row >= 8:
            c2(f"buffer_load_dwordx4 {vr(AX+4*row,4,'a')}, v{vx2}, s[12:15], s37 offen offset:{1024+2560*(row-8)}")
        else:
            c2(f"s_add_u32 s21, s37, {1280*row}")
            c2(f"buffer_load_dwordx4 {vr(AX+4*row,4,'a')}, v{vx1}, s[12:15], s21 offen")
    def wload(pr, i):
        if "now1" in EXP:
            return
        pr(f"buffer_load_dwordx4 {vr(AW+4*i,4,'a')}, v{vl16}, s[24:27], s39 offen offset:{(i%4)*1024}")
        if i % 4 == 3:
            pr("s_add_u32 s39, s39, 4096")
    NW0, NW1 = 4, 36
    for i in range(NW0):
        wload(c2, i)
    k = 0
    for T in range(3):
        if T < 2:
            c2(f"v_add_f32 v{ad}, {f32(16.0*T)}, v{fc}")
        else:
            c2(f"""v_and_b32 v{t0}, 7, v{vc}
                   v_add_u32 v{t0}, 32, v{t0}
                   v_cvt_f32_u32 v{ad}, v{t0}""")
        c2(f"v_mul_f32 v{ad}, {f32(1/40)}, v{ad}")
        for t, fq in ((0, fq4), (1, fq1)):
            c2(f"v_mul_f32 v{a0}, v{ad}, v{fq}")
            for r in range(4):
                x0, x1, x2, x3 = u[4*(k&1):4*(k&1)+4]; k += 1
                c2(f"""v_fmamk_f32 v{x0}, v{ad}, {f32(float(r))}, v{a0}
                       v_cos_f32 v{x1}, v{x0}
                       v_sin_f32 v{x2}, v{x0}""")
                if T < 2 and t == 0:
                    c2(f"v_cvt_pk_bf16_f32 v{B0[T]+r}, v{x1}, -v{x2}")
                else:
                    c2(f"v_cvt_pk_bf16_f32 v{x3}, v{x1}, -v{x2}")
                    if T < 2:
                        c2(f"v_cndmask_b32 v{B1l[T]+r}, 0, v{x3}, s[50:51]\nv_cndmask_b32 v{B1h[T]+r}, v{x3}, 0, s[50:51]")
                    elif t == 0:
                        c2(f"v_cndmask_b32 v{B02l+r}, 0, v{x3}, s[52:53]\nv_cndmask_b32 v{B02h+r}, v{x3}, 0, s[52:53]")
                    else:
                        c2(f"v_cndmask_b32 v{B12+r}, 0, v{x3}, s[58:59]")
    c2(f"""v_and_b32 v{t0}, 1, v{vc}
           v_lshlrev_b32 v{t0}, 4, v{t0}
           v_mov_b32 v{t1}, 0x3f80
           v_lshlrev_b32 v{t1}, v{t0}, v{t1}
           v_lshrrev_b32 v{t0}, 1, v{vc}
           v_lshlrev_b32 v{t2}, 2, v{vq}
           v_sub_u32 v{t0}, v{t0}, v{t2}""")
    for k in range(4):
        c2(f"""v_cmp_eq_u32 vcc, {k}, v{t0}
               v_cndmask_b32 v{Il+k}, 0, v{t1}, vcc
               v_cmp_eq_u32 vcc, {k-8}, v{t0}
               v_cndmask_b32 v{Ih+k}, 0, v{t1}, vcc""")
    def yaddr(dst, n, k1reg, chunk_text, zero):
        c2(f"""v_subrev_u32 v{t0}, 1, v{k1reg}
               v_sub_u32 v{t1}, 39, v{k1reg}
               v_cndmask_b32 v{t0}, v{t1}, v{t0}, s[50:51]
               v_sub_u32 v{t1}, 3, v{vq}
               v_cndmask_b32 v{t1}, v{t1}, v{vq}, s[50:51]
               v_mul_u32_u24 v{t1}, 80, v{t1}
               v_add_u32 v{t1}, v{t1}, v{t0}
               v_and_b32 v{t0}, 15, v{t0}
               v_xor_b32 v{t0}, {chunk_text}, v{t0}
               v_lshlrev_b32 v{t0}, 4, v{t0}
               v_lshl_add_u32 v{dst}, v{t1}, 8, v{t0}""")
        if zero:
            c2(f"""s_mov_b32 s60, 0x00010001
                   s_mov_b32 s61, 0
                   v_mov_b32 v{t0}, 0x40000
                   v_cndmask_b32 v{dst}, v{dst}, v{t0}, s[60:61]""")
        for r in range(1, n):
            c2(f"v_xor_b32 v{dst+r}, {8*r}, v{dst}")
    c2("s_lshl_b32 s33, s3, 2")
    yaddr(ry, 8, vc, "s33", True)
    c2(f"""v_and_b32 v{t2}, 7, v{vc}
           v_add_u32 v{t2}, 16, v{t2}
           v_lshrrev_b32 v{t3}, 3, v{vc}
           v_lshl_add_u32 v{t3}, v{t3}, 1, s33""")
    yaddr(ry + 8, 4, t2, f"v{t3}", False)
    c2(f"""s_mul_i32 s33, s31, 20480
           s_add_u32 s33, s33, {LA}
           s_lshl_b32 s40, s30, 3
           v_lshrrev_b32 v{t0}, 1, v{vq}
           v_and_b32 v{t1}, 1, v{vq}
           v_lshlrev_b32 v{t1}, 3, v{t1}
           v_lshl_add_u32 v{t0}, v{t0}, 8, v{t1}
           v_add_u32 v{t0}, s33, v{t0}
           v_xor_b32 v{t1}, s40, v{vc}
           v_lshl_add_u32 v{t1}, v{t1}, 4, v{t0}
           v_lshl_add_u32 v{wa}, v{vc}, 9, v{t1}
           v_and_b32 v{t2}, 7, v{vc}
           v_lshrrev_b32 v{t1}, 3, v{vc}
           v_lshlrev_b32 v{t1}, 2, v{t1}
           v_xor_b32 v{t1}, v{t1}, v{t2}
           v_xor_b32 v{t1}, s40, v{t1}
           v_lshl_add_u32 v{t1}, v{t1}, 4, v{t0}
           v_lshl_add_u32 v{wa2}, v{t2}, 9, v{t1}""")
    for r in range(1, 8):
        c2(f"v_xor_b32 v{wa+r}, {16*r}, v{wa}")
    for r in range(1, 4):
        c2(f"v_xor_b32 v{wa2+r}, {16*r}, v{wa2}")
    p.extend(schedule(c2, "p3 cst"))
    p.stamp(2)
    p.wait_tag("y")
    p("s_barrier")
    p.stamp(3)
    q = Prog()
    V.release(mk)
    Aop = [V.get(12, 4) for _ in range(2)]
    DA = V.get(24, 4)
    E = [V.get(12, 4) for _ in range(2)]
    DB = V.get(20, 4)
    TR = [(V.get(4), V.get(4)) for _ in range(2)]
    for i in range(NW0, NW1):
        wload(q, i)
        if i == 24:
            l2pf(q, W2P, 819200, 0, 1)
    q(f"""v_lshrrev_b32 v{t0}, 1, v{vq}
          v_xor_b32 v{t0}, v{t0}, v{vc}
          v_lshlrev_b32 v{t0}, 4, v{t0}
          v_lshl_add_u32 v{t0}, v{vq}, 8, v{t0}
          s_mul_i32 s41, s31, 10240
          s_add_u32 s41, s41, {LA}
          s_mul_i32 s42, s32, 20480
          s_add_u32 s43, s41, 20480
          s_sub_u32 s43, s43, s42
          s_add_u32 s42, s42, s41
          s_lshl_b32 s44, s31, 6""")
    for n in range(8):
        q(f"""s_add_u32 s33, s44, {32*n}
              s_and_b32 s33, s33, 0xf0
              v_xor_b32 v{t1}, s33, v{t0}
              v_add_u32 v{ra[0]+n}, s42, v{t1}
              v_add_u32 v{ra[1]+n}, s43, v{t1}""")
    kk = 0
    for rho in range(4):
        A_, da, e, db = Aop[rho & 1], DA, E[rho & 1], DB
        for s_ in range(3):
            q(f"ds_read2st64_b64 {vr(A_+4*s_,4)}, v{ry+rho+4*s_} offset0:0 offset1:20", tag="y")
        for s_ in range(3):
            q(f"{MF} {vr(da+8*s_,4)}, {vr(A_+4*s_,4)}, {vr(SAr,4)}, 0")
            q(f"{MF} {vr(da+8*s_+4,4)}, {vr(A_+4*s_,4)}, {vr(SAi,4)}, 0")
        for s_ in range(3):
            cc, ss = (T0c, T0s) if s_ < 2 else (T1c, T1s)
            tr, ti = TR[kk & 1]; kk += 1
            cmul(q, da+8*s_, da+8*s_+4, cc, ss, tr, ti, +1)
            for r in range(4):
                q(f"v_cvt_pk_bf16_f32 v{e+4*s_+r}, v{tr+r}, v{ti+r}")
        for ch in range(2):
            row = rho + 4 * ch
            for T in range(2):
                d_ = vr(db + 8*ch + 4*T, 4)
                q(f"{MF} {d_}, {vr(Ih if T else Il,4)}, {vr(AX+4*row,4,'a')}, 0")
                q(f"{MF} {d_}, {vr(e+4*ch,4)}, {vr(B0[T],4)}, {d_}")
                q(f"{MF} {d_}, {vr(e+8,4)}, {vr(B1h[T] if ch else B1l[T],4)}, {d_}")
        d_ = vr(db + 16, 4)
        q(f"{MF} {d_}, {vr(Ih if rho & 1 else Il,4)}, {vr(AX+32+4*(rho>>1),4,'a')}, 0")
        q(f"{MF} {d_}, {vr(e,4)}, {vr(B02l,4)}, {d_}")
        q(f"{MF} {d_}, {vr(e+4,4)}, {vr(B02h,4)}, {d_}")
        q(f"{MF} {d_}, {vr(e+8,4)}, {vr(B12,4)}, {d_}")
        for k in range(5):
            d0 = db + 4 * k
            q(f"v_cvt_pk_bf16_f32 v{d0}, v{d0}, v{d0+1}")
            q(f"v_cvt_pk_bf16_f32 v{d0+1}, v{d0+2}, v{d0+3}")
            if k < 4:
                q(f"ds_write_b64 v{wa+rho+4*(k>>1)}, {vr(d0,2)} offset:{8192*(k&1)}", tag="a")
            else:
                q(f"ds_write_b64 v{wa2+rho}, {vr(d0,2)} offset:16384", tag="a")
    p.extend(schedule(q, "p3 ifft"))
    p("s_waitcnt lgkmcnt(0)\ns_barrier")
    p.stamp(4)
    V.release(mk)
    g = Prog()
    ACC = V.get(40, 4)
    SS, SG, ONE = V.get(4, 4), V.get(4, 4), V.get(4, 4)
    BF = V.get(48, 4); NBF = 12
    vho, vrw, vrr, vsw, vsr = (V.get() for _ in range(5))
    CSV = B0[0]
    for i in range(NW1, 50):
        wload(g, i)
    g(f"""v_mov_b32 v{ONE}, 0x3f803f80
          v_mov_b32 v{ONE+1}, 0x3f803f80
          v_mov_b32 v{ONE+2}, 0x3f803f80
          v_mov_b32 v{ONE+3}, 0x3f803f80
          s_cmp_eq_u32 s3, s29
          s_cselect_b32 s33, 0, 0x80000000
          v_add_u32 v{vho}, s33, v{vl16}
          v_add_u32 v{vhr}, s33, v{vl128}
          s_lshl_b32 s45, s28, 1
          s_add_u32 s45, s45, s32
          s_mul_i32 s46, s45, 20480
          s_mul_i32 s33, s31, 10240
          s_add_u32 s47, s46, s33
          s_add_u32 s47, s47, {HB}
          s_mov_b32 s56, s47
          s_add_u32 s57, s47, 8192
          s_mul_i32 s21, s38, 320
          s_add_u32 s21, s21, {CS}
          v_lshlrev_b32 v{t0}, 4, v{vq}""")
    for f in range(5):
        g(f"buffer_load_dwordx4 {vr(CSV+4*f,4)}, v{t0}, s[24:27], s21 offen offset:{64*f}")
    for n in range(10):
        for lt in range(2):
            b_ = BF + 4 * ((2*n + lt) % NBF)
            g(f"ds_read_b128 {vr(b_,4)}, v{ra[lt]+(n%8)} offset:{1024*n}")
        for lt in range(2):
            b_ = vr(BF + 4 * ((2*n + lt) % NBF), 4)
            for f in range(5):
                acc = vr(ACC + 8*f + 4*lt, 4)
                g(f"{MF} {acc}, {vr(AW+4*(5*n+f),4,'a')}, {b_}, {acc if n else 0}")
            if lt == 0:
                g(f"{MF} {vr(SS,4)}, {vr(ONE,4)}, {b_}, {vr(SS,4) if n else 0}")
                g(f"{MF} {vr(SG,4)}, {b_}, {b_}, {vr(SG,4) if n else 0}")
                g(f"buffer_store_dwordx4 {b_}, v{vho}, s[24:27], s47 offen offset:{(n%4)*1024} sc1")
                if n % 4 == 3:
                    g("s_add_u32 s47, s47, 4096")
                if n in (2, 5, 8):
                    l2pf(g, W3P, 1966080, n // 3, 4)
    g(f"""v_add_u32 v{vrw}, s19, v{vl16}
          s_xor_b32 s33, s3, 2
          s_mul_i32 s33, s33, 5120
          v_add_u32 v{vrr}, s33, v{vl16}
          s_lshl_b32 s33, s3, 7
          v_lshl_add_u32 v{vsw}, v{vc}, 3, s33
          v_xor_b32 v{vsr}, 0x180, v{vsw}
          s_mov_b32 s60, 0xaaaaaaaa
          s_mov_b32 s61, 0xaaaaaaaa
          s_mov_b32 s62, 0xcccccccc
          s_mov_b32 s63, 0xcccccccc
          s_mov_b32 s64, 0x00f0000f
          s_mov_b32 s65, 0xf0000f00""")
    for f in range(5):
        g(f"ds_write_b128 v{vrw}, {vr(ACC+8*f+4,4)} offset:{LR+1024*f}", tag="r")
    g(f"""v_cndmask_b32 v{SG}, v{SG}, v{SG+1}, s[60:61]
          v_cndmask_b32 v{SG+2}, v{SG+2}, v{SG+3}, s[60:61]
          v_cndmask_b32 v{SS+1}, v{SG}, v{SG+2}, s[62:63]""")
    p.extend(schedule(g, "p3 gemm"))
    p(f"""s_mov_b64 exec, s[64:65]
          ds_write_b64 v{vsw}, {vr(SS,2)} offset:{LS}
          s_mov_b64 exec, -1
          s_waitcnt lgkmcnt(0)
          s_barrier""")
    p.stamp(5)
    e = Prog()
    e(f"ds_read_b64 {vr(SS,2)}, v{vsw} offset:{LS}")
    e(f"ds_read_b64 {vr(SS+2,2)}, v{vsr} offset:{LS}")
    for f in range(5):
        e(f"ds_read_b128 {vr(ACC+8*f+4,4)}, v{vrr} offset:{LR+1024*f}")
    for c in range(3):
        wchunk(e, c)
    vk0 = V.get(2, 2); rr = V.get(2, 2); mr = V.get(2, 2); st = V.get(2, 2)
    e(f"""v_mov_b32 v{vk0}, {f32(GK0)}
          v_mov_b32 v{vk0+1}, {f32(GK0)}
          s_mov_b32 s66, {f32(GK1)}
          s_mov_b32 s67, {f32(GK1)}
          v_pk_add_f32 {vr(SS,2)}, {vr(SS,2)}, {vr(SS+2,2)}
          v_mul_f32 v{st}, {f32(1/640)}, v{SS}
          v_mul_f32 v{t0}, {f32(1/640)}, v{SS+1}
          v_fma_f32 v{t0}, -v{st}, v{st}, v{t0}
          v_max_f32 v{t0}, 0, v{t0}
          v_add_f32 v{t1}, {f32(1e-5)}, v{t0}
          v_rsq_f32 v{st+1}, v{t1}
          v_mul_f32 v{t0}, v{t0}, v{st+1}
          v_fmaak_f32 v{t0}, v{t0}, v{st+1}, {f32(1e-5)}
          v_rsq_f32 v{t0}, v{t0}
          v_mul_f32 v{rr}, v{t0}, v{st+1}
          v_mul_f32 v{mr}, v{rr}, v{st}
          s_mul_i32 s33, s29, 5120
          s_add_u32 s46, s46, s33
          s_add_u32 s46, s46, {GB}
          s_mul_i32 s33, s30, 3072
          s_add_u32 s48, s46, s33
          s_lshl_b32 s33, s30, 9
          s_add_u32 s49, s46, s33
          s_lshl_b32 s45, s45, 7
          s_add_u32 s44, s45, {ST1}
          s_add_u32 s45, s45, {FL}
          s_mul_i32 s33, s30, 2560
          s_add_u32 s43, s46, s33
          v_lshlrev_b32 v{t3}, 3, v{vc}""")
    GT = [BF + 4 * k for k in range(5)]
    O = BF + 32
    for f in range(5):
        x = ACC + 8 * f
        for h in (0, 2):
            e(f"v_pk_add_f32 {vr(x+h,2)}, {vr(x+h,2)}, {vr(x+4+h,2)}")
            e(f"v_pk_mul_f32 {vr(CSV+4*f+h,2)}, {vr(CSV+4*f+h,2)}, {vr(mr,2)} op_sel_hi:[1,0]")
            e(f"v_pk_fma_f32 {vr(x+h,2)}, {vr(x+h,2)}, {vr(rr,2)}, {vr(CSV+4*f+h,2)} op_sel_hi:[1,0,1] neg_lo:[0,0,1] neg_hi:[0,0,1]")
        gelu4(e, x, GT[f], vk0, 66)
        if f & 1:
            pr_ = f >> 1
            for r in range(4):
                e(f"v_cvt_pk_bf16_f32 v{O+4*pr_+r}, v{ACC+16*pr_+r}, v{ACC+16*pr_+8+r}")
            e(f"buffer_store_dwordx4 {vr(O+4*pr_,4)}, v{vl16}, s[24:27], s48 offen offset:{1024*pr_} sc1")
    def odd_pack(pr, x, o):
        pr(f"""v_cvt_pk_bf16_f32 v{o}, v{x}, v{x+1}
               v_cvt_pk_bf16_f32 v{o+2}, v{x}, v{x+1}
               v_cvt_pk_bf16_f32 v{o+1}, v{x+2}, v{x+3}
               v_cvt_pk_bf16_f32 v{o+3}, v{x+2}, v{x+3}""")
    def odd_swap(pr, o):
        pr(f"v_permlane16_swap_b32 v{o}, v{o+2}\nv_permlane16_swap_b32 v{o+1}, v{o+3}")
    odd_pack(e, ACC + 32, O + 8); odd_swap(e, O + 8)
    p.extend(schedule(e, "p3 epi"))
    p(f"""s_mov_b64 exec, s[54:55]
          buffer_store_dwordx4 {vr(O+8,4)}, v{vo2}, s[24:27], s49 offen offset:2048 sc1
          s_mov_b64 exec, 0xffff""")
    p(f"buffer_store_dwordx2 {vr(st,2)}, v{t3}, s[24:27], s44 offen sc1", tag="st")
    p("s_mov_b64 exec, -1")
    p.stamp(6)

    def signal(mask, voff, sreg, rb):
        p.wait_tag("st")
        p(f"""s_mov_b64 exec, {mask}
              buffer_atomic_add v{vone}, v{voff}, s[24:27], s{sreg} offen sc1""")
        for m, va_, sr in rb:
            p(f"""s_mov_b64 exec, {m}
                  buffer_load_dword {junk()}, v{va_}, s[24:27], s{sr} offen sc1""")
        p("s_mov_b64 exec, -1")
    def poll(name, mask, vaddr, sreg, target):
        p(f"""s_mov_b64 exec, {mask}
              s_movk_i32 s22, 0x2000
              {name}:
              v_mov_b32 v{t3}, 0
              buffer_atomic_add v{t3}, v{vaddr}, s[24:27], s{sreg} offen sc0 sc1
              s_waitcnt vmcnt(0)
              v_cmp_gt_u32 vcc, {target}, v{t3}
              s_sub_u32 s22, s22, 1
              s_cbranch_scc1 {name}_OUT
              s_cbranch_vccnz {name}
              {name}_OUT:
              s_mov_b64 exec, -1""")
    WR_N, LAG = 16, 12
    def wread(pr, WR, c0, n):
        off = slot_of(c0 + n // 20) + (n % 20) * 1024
        pr(f"ds_read_b128 {vr(WR+4*(n%WR_N),4)}, v{vb[off>>16]} offset:{off & 65535}")

    V.release(base_mark)
    va = V.get(4); vh2, vz, vpl = V.get(), V.get(), V.get()
    ACC = V.get(48, 4)
    WR = V.get(4 * WR_N, 4)
    RES = V.get(24, 4)
    O = V.get(24, 4)
    st = V.get(2, 2); rr = V.get(4, 2); mr = V.get(4, 2); vk0 = V.get(2, 2)
    SL = V.get(8); GT = [V.get(4, 2) for _ in range(3)]; CT = V.get(4, 2)
    s4 = Prog()
    wchunk(s4, 3); wchunk(s4, 4)
    s4(f"""s_lshl_b32 s28, s9, 4
           s_lshr_b32 s33, s8, 3
           s_lshl_b32 s33, s33, 2
           s_add_u32 s28, s28, s33
           s_add_u32 s28, s28, s3
           s_and_b32 s29, s8, 7
           s_lshr_b32 s30, s29, 1
           s_and_b32 s31, s29, 1
           s_mul_i32 s40, s28, 20480
           s_mul_i32 s33, s30, 5120
           s_add_u32 s40, s40, s33
           s_mul_i32 s33, s31, 3072
           s_add_u32 s41, s40, s33
           s_lshl_b32 s33, s31, 9
           s_add_u32 s42, s40, s33
           s_add_u32 s42, s42, 2048
           v_and_b32 v{t1}, 1, v{vq}
           v_lshl_add_u32 v{vh2}, v{t1}, 3, v{vo2}
           v_mov_b32 v{vz}, 0
           s_lshl_b32 s33, s28, 4
           v_add_u32 v{t0}, s33, v{vc}
           v_mov_b32 v{SL}, 0x80000000""")
    for g_, sh in enumerate((1, -1, 2, -2)):
        s4(f"""v_subrev_u32 v{t1}, {sh}, v{t0}
               v_lshrrev_b32 v{t2}, 4, v{t1}
               v_mul_u32_u24 v{t2}, 20480, v{t2}
               v_lshl_add_u32 v{t2}, v{vq}, 8, v{t2}
               v_cmp_gt_u32 vcc, 2048, v{t1}
               v_and_b32 v{t1}, 15, v{t1}
               v_lshl_add_u32 v{t2}, v{t1}, 4, v{t2}
               v_cndmask_b32 v{va+g_}, v{SL}, v{t2}, vcc""")
    s4(f"""v_add3_u32 v{t0}, v{vc}, s28, -1
           v_max_i32 v{t0}, 0, v{t0}
           v_min_u32 v{t0}, 127, v{t0}
           v_lshlrev_b32 v{vpl}, 7, v{t0}
           s_mov_b32 s23, {FL}""")
    p.extend(schedule(s4))
    signal(1, vz, 45, [("0xfffff", vl128, 43), (-1, vhr, 56), ("0xffff", vhr, 57)])
    p.wait_tag("w4")
    p("s_barrier")
    poll("KM_P4", 7, vpl, 23, 8)
    p.stamp(7)
    g = Prog()
    g(f"""s_add_u32 s32, s41, {HB}
          s_add_u32 s33, s42, {HB}
          s_lshl_b32 s34, s28, 7
          s_add_u32 s35, s34, {ST1}
          v_lshlrev_b32 v{t0}, 3, v{vc}
          buffer_load_dwordx2 {vr(st,2)}, v{t0}, s[24:27], s35 offen sc1
          buffer_load_dwordx4 {vr(RES,4)}, v{vl16}, s[24:27], s32 offen sc1
          buffer_load_dwordx4 {vr(RES+4,4)}, v{vl16}, s[24:27], s32 offen offset:1024 sc1
          buffer_load_dwordx2 {vr(RES+8,2)}, v{vh2}, s[24:27], s33 offen sc1
          s_mov_b32 s36, {GB}""")
    for ks in range(20):
        g(f"buffer_load_dwordx4 {vr(4*ks,4,'a')}, v{va+ks//5}, s[24:27], s36 offen offset:{(ks%4)*1024} sc1")
        if ks % 4 == 3:
            g("s_add_u32 s36, s36, 4096")
    l2pf(g, W3P, 1966080, 3, 4)
    wchunk(g, 5); wchunk(g, 6)
    def unpack(pr, src, dst):
        for pr_ in range(2):
            for r in range(4):
                pr(f"v_lshlrev_b32 v{dst+8*pr_+r}, 16, v{src+4*pr_+r}")
                pr(f"v_and_b32 v{dst+8*pr_+4+r}, 0xffff0000, v{src+4*pr_+r}")
        for h in range(2):
            pr(f"v_lshlrev_b32 v{dst+16+2*h}, 16, v{src+8+h}")
            pr(f"v_and_b32 v{dst+16+2*h+1}, 0xffff0000, v{src+8+h}")
    unpack(g, RES, RESID)
    g(f"v_mul_f32 v{mr}, v{st}, v{st+1}\nv_mov_b32 v{rr}, v{st+1}")
    for k in range(10):
        g(f"v_pk_fma_f32 {vr(ACC+2*k,2)}, {vr(RESID+2*k,2)}, {vr(rr,2)}, {vr(mr,2)} op_sel_hi:[1,0,0] neg_lo:[0,0,1] neg_hi:[0,0,1]")
    for n in range(100):
        wread(g, WR, 0, n)
        ks, f = divmod(n, 5)
        g(f"{MF} {vr(ACC+4*f,4)}, {vr(WR+4*(n%WR_N),4)}, {vr(4*ks,4,'a')}, {vr(ACC+4*f,4)}")
    g(f"""s_add_u32 s32, s41, {X1B}
          s_add_u32 s33, s42, {X1B}
          s_mov_b32 s38, 0x3f803f80
          v_mov_b32 v{t0}, 0
          v_mov_b32 v{t1}, 0""")
    for pr_ in range(2):
        for r_ in range(4):
            g(f"v_cvt_pk_bf16_f32 v{O+4*pr_+r_}, v{ACC+8*pr_+r_}, v{ACC+8*pr_+4+r_}")
        g(f"buffer_store_dwordx4 {vr(O+4*pr_,4)}, v{vl16}, s[24:27], s32 offen offset:{1024*pr_} sc1")
    odd_pack(g, ACC + 16, O + 8)
    g(f"v_mov_b32 v{O+12}, v{O+8}\nv_mov_b32 v{O+13}, v{O+9}")
    odd_swap(g, O + 8)
    for k in (0, 1, 2, 3, 4, 5, 6, 7, 12, 13):
        g(f"v_dot2c_f32_bf16 v{t0}, s38, v{O+k}\nv_dot2c_f32_bf16 v{t1}, v{O+k}, v{O+k}")
    g(f"""v_permlane16_swap_b32 v{t0}, v{t1}
          v_add_f32 v{t0}, v{t0}, v{t1}
          v_mov_b32 v{t1}, v{t0}
          v_permlane32_swap_b32 v{t0}, v{t1}
          v_add_f32 v{t0}, v{t0}, v{t1}
          v_lshrrev_b32 v{t2}, 2, v{vl16}
          s_lshl_b32 s35, s29, 14
          s_add_u32 s35, s35, s34
          s_add_u32 s35, s35, {ST3}
          s_add_u32 s45, s34, {FL + 16384}
          s_mul_i32 s43, s31, 2560
          s_add_u32 s43, s43, s40
          s_add_u32 s43, s43, {X1B}""")
    p.extend(schedule(g, "p4"))
    p(f"""s_mov_b64 exec, s[54:55]
          buffer_store_dwordx4 {vr(O+8,4)}, v{vo2}, s[24:27], s33 offen sc1
          s_mov_b64 exec, s[50:51]""")
    p(f"buffer_store_dword v{t0}, v{t2}, s[24:27], s35 offen sc1", tag="st")
    p("s_mov_b64 exec, -1\ns_barrier")
    p.stamp(8)
    s5 = Prog()
    wchunk(s5, 7); wchunk(s5, 8)
    s5(f"v_mov_b32 v{O+8}, v{O+12}\nv_mov_b32 v{O+9}, v{O+13}")
    unpack(s5, O, WR)
    for k in range(10):
        s5(f"v_pk_add_f32 {vr(RESID+2*k,2)}, {vr(RESID+2*k,2)}, {vr(WR+2*k,2)}")
    s5(f"""s_lshl_b32 s46, s9, 4
           s_lshr_b32 s33, s8, 4
           s_lshl_b32 s33, s33, 3
           s_add_u32 s46, s46, s33
           s_lshl_b32 s33, s3, 1
           s_add_u32 s46, s46, s33
           s_and_b32 s47, s8, 15
           s_lshl_b32 s48, s46, 7
           s_add_u32 s23, s48, {FL + 16384}
           s_mul_i32 s36, s46, 20480
           s_add_u32 s36, s36, {X1B}
           s_add_u32 s37, s36, 20480
           s_mul_i32 s32, s47, 384
           s_add_u32 s32, s32, {CS + 40*64}
           v_lshlrev_b32 v{t0}, 4, v{vq}""")
    CSV = RES
    for f in range(6):
        s5(f"buffer_load_dwordx4 {vr(CSV+4*f,4)}, v{t0}, s[24:27], s32 offen offset:{64*f}")
    p.extend(schedule(s5))
    signal(1, vz, 45, [("0xfffff", vl128, 43)])
    wchunk(p, 9); wchunk(p, 10)
    poll("KM_P5", 3, vl128, 23, 8)
    p("s_barrier")
    p.stamp(9)
    g = Prog()
    acc = lambda f, lt: ACC + 4 * (2 * f + lt)
    for ks in range(20):
        for lt in range(2):
            g(f"buffer_load_dwordx4 {vr(4*(2*ks+lt),4,'a')}, v{vl16}, s[24:27], s{36+lt} offen offset:{(ks%4)*1024} sc1")
        if ks % 4 == 3:
            g("s_add_u32 s36, s36, 4096\ns_add_u32 s37, s37, 4096")
    g(f"""v_lshrrev_b32 v{t0}, 1, v{vq}
          v_lshlrev_b32 v{t0}, 16, v{t0}
          v_and_b32 v{t1}, 1, v{vq}
          v_lshl_add_u32 v{t0}, v{t1}, 6, v{t0}
          v_lshl_add_u32 v{t0}, v{vc}, 2, v{t0}
          s_add_u32 s32, s48, {ST3}""")
    for jj in range(4):
        for lt in range(2):
            g(f"buffer_load_dword v{SL+4*lt+jj}, v{t0}, s[24:27], s32 offen offset:{128*lt} sc1")
        if jj < 3:
            g("s_add_u32 s32, s32, 16384")
    for pc in range(4):
        l2pf(g, W4P, 1966080, pc, 4)
    wchunk(g, 11); wchunk(g, 12)
    for n in range(120):
        wread(g, WR, 5, n)
        ks, f = divmod(n, 6)
        for lt in range(2):
            a_ = vr(acc(f, lt), 4)
            g(f"{MF} {a_}, {vr(WR+4*(n%WR_N),4)}, {vr(4*(2*ks+lt),4,'a')}, {a_ if ks else 0}")
    for lt in range(2):
        a = SL + 4 * lt
        g(f"v_add_f32 v{a}, v{a}, v{a+1}\nv_add_f32 v{a+2}, v{a+2}, v{a+3}\nv_add_f32 v{a}, v{a}, v{a+2}")
    g(f"""v_permlane32_swap_b32 v{SL}, v{SL+4}
          v_add_f32 v{SL}, v{SL}, v{SL+4}
          v_mov_b32 v{SL+1}, v{SL}
          v_permlane16_swap_b32 v{SL}, v{SL+1}
          v_mul_f32 v{SL}, {f32(1/640)}, v{SL}
          v_mul_f32 v{SL+1}, {f32(1/640)}, v{SL+1}
          v_fma_f32 v{SL+1}, -v{SL}, v{SL}, v{SL+1}
          v_max_f32 v{SL+1}, 0, v{SL+1}
          v_add_f32 v{SL+1}, {f32(1e-5)}, v{SL+1}
          v_rsq_f32 v{rr}, v{SL+1}
          v_mul_f32 v{mr}, v{rr}, v{SL}
          v_mov_b32 v{rr+2}, v{rr}
          v_mov_b32 v{mr+2}, v{mr}
          v_permlane32_swap_b32 v{rr}, v{rr+2}
          v_permlane32_swap_b32 v{mr}, v{mr+2}
          v_mov_b32 v{vk0}, {f32(GK0)}
          v_mov_b32 v{vk0+1}, {f32(GK0)}
          s_mul_i32 s40, s46, {48*1024}
          s_mul_i32 s32, s47, 3072
          s_add_u32 s40, s40, s32
          s_add_u32 s43, s40, {UB}
          s_add_u32 s44, s43, {48*1024}""")
    p.extend(schedule(g, "p5"))
    p("s_barrier")
    p.stamp(10)
    e = Prog()
    k = 0
    for pr_ in range(3):
        wchunk(e, 13 + pr_)
        for lt in range(2):
            for f in (2*pr_, 2*pr_+1):
                x = acc(f, lt)
                for h in (0, 2):
                    e(f"v_pk_mul_f32 {vr(CT+h,2)}, {vr(CSV+4*f+h,2)}, {vr(mr+2*lt,2)} op_sel_hi:[1,0]")
                    e(f"v_pk_fma_f32 {vr(x+h,2)}, {vr(x+h,2)}, {vr(rr+2*lt,2)}, {vr(CT+h,2)} op_sel_hi:[1,0,1] neg_lo:[0,0,1] neg_hi:[0,0,1]")
                gelu4(e, x, GT[k % 3], vk0, 66); k += 1
            o = O + 12 * lt + 4 * pr_
            for r_ in range(4):
                e(f"v_cvt_pk_bf16_f32 v{o+r_}, v{acc(2*pr_,lt)+r_}, v{acc(2*pr_+1,lt)+r_}")
            e(f"buffer_store_dwordx4 {vr(o,4)}, v{vl16}, s[24:27], s{43+lt} offen offset:{1024*pr_} sc1", tag="st")
    p.extend(schedule(e, "p5 epi"))
    p.stamp(11)
    s6 = Prog()
    wchunk(s6, 16); wchunk(s6, 17)
    s6(f"""s_add_u32 s45, s48, {FL + 32768}
           s_add_u32 s23, s34, {FL + 32768}
           s_mul_i32 s36, s28, {48*1024}
           s_add_u32 s36, s36, {UB}""")
    srd(s6, 12, 6, S * D * 2)
    p.extend(schedule(s6))
    signal(3, vl128, 45, [("0xffffff", vl128, 43), ("0xffffff", vl128, 44)])
    wchunk(p, 18)
    poll("KM_P6", 1, vz, 23, 16)
    p("s_barrier")
    p.stamp(12)
    def aload(pr, ks):
        pr(f"buffer_load_dwordx4 {vr(4*ks,4,'a')}, v{vl16}, s[24:27], s36 offen offset:{(ks%4)*1024} sc1")
        if ks % 4 == 3:
            pr("s_add_u32 s36, s36, 4096")
    def mf6(pr, n):
        ks, f = divmod(n, 5)
        pr(f"{MF} {vr(RESID+4*f,4)}, {vr(WR+4*(n%WR_N),4)}, {vr(4*ks,4,'a')}, {vr(RESID+4*f,4)}")
    plan = [(0, 60, range(0, 22), ()), (60, 100, range(22, 30), (19, 20)), (100, 160, range(30, 42), (21, 22)), (160, 240, range(42, 48), ())]
    for ri, (n0, n1, kss, chunks) in enumerate(plan):
        g = Prog()
        for ks in kss:
            aload(g, ks)
        for c in chunks:
            wchunk(g, c)
        for n in range(n0, n1):
            if n >= LAG:
                mf6(g, n - LAG)
            wread(g, WR, 11, n)
        if ri < 3:
            p.extend(schedule(g, f"p6 r{ri}"))
            if ri == 2:
                p.wait_tag("w22")
            p("s_barrier")
    for n in range(240 - LAG, 240):
        mf6(g, n)
    g(f"""v_mul_u32_u24 v{t0}, 1280, v{vc}
          v_lshl_add_u32 v{t1}, v{vq}, 4, v{t0}
          v_lshl_add_u32 v{t2}, v{vq}, 3, v{t0}
          s_mul_i32 s40, s28, {16*1280}
          s_mul_i32 s32, s30, 320
          s_add_u32 s40, s40, s32
          s_mul_i32 s32, s31, 192
          s_add_u32 s41, s40, s32
          s_lshl_b32 s32, s31, 5
          s_add_u32 s42, s40, s32""")
    for pr_ in range(2):
        for r_ in range(4):
            g(f"v_cvt_pk_bf16_f32 v{O+4*pr_+r_}, v{RESID+8*pr_+r_}, v{RESID+8*pr_+4+r_}")
        g(f"buffer_store_dwordx4 {vr(O+4*pr_,4)}, v{t1}, s[12:15], s41 offen offset:{64*pr_}")
    odd_pack(g, RESID + 16, O + 8); odd_swap(g, O + 8)
    p.extend(schedule(g, "p6 r3"))
    p(f"""s_mov_b64 exec, s[54:55]
          buffer_store_dwordx4 {vr(O+8,4)}, v{t2}, s[12:15], s42 offen offset:128""")
    p.stamp(13)
    p.stamps_out(2, 14)
    p("KM_END:")
    return [head, p], 256, 256, 163840
```

```python
S, D, F = 2048, 640, 1536
XW   = 0
YC   = XW + 256 * 20480
HB   = YC + 2621440
GB   = HB + 2621440
X1B  = GB + 2621440
UB   = X1B + 2621440
W1P  = UB + 6291456
W2P  = W1P + 819200
W3P  = W2P + 819200
W4P  = W3P + 1966080
CS   = W4P + 1966080
FL   = CS + 8704
ST1  = FL + 3 * 16384
ST3  = ST1 + 2048 * 8
PROF = ST3 + 8 * 2048 * 8
WS_END = PROF + 8 * 65536
assert all(x % 128 == 0 for x in (YC, HB, GB, X1B, UB, W1P, W2P, W3P, W4P, CS, FL, ST1, ST3))
```

```python
from common import *

def relayout(first, END):
    b = Prog()
    b(f"""K2_RELAYOUT:
         s_load_dwordx8 s[4:11], s[0:1], 32
         s_load_dwordx2 s[12:13], s[0:1], 80
         v_and_b32 v1, 15, v0
         v_bfe_u32 v2, v0, 4, 2
         v_lshrrev_b32 v3, 6, v0
         v_readfirstlane_b32 s3, v3
         v_and_b32 v3, 63, v0
         v_lshlrev_b32 v3, 4, v3
         s_sub_u32 s14, s2, {first}
         s_mov_b32 s36, 0x05040100
         s_mov_b32 s37, 0x07060302
         s_and_b32 s30, s3, 1
         s_lshr_b32 s31, s3, 1
         v_mov_b32 v8, 0x3f803f80
         v_mov_b32 v9, 0x3f803f80
         v_mov_b32 v10, 0x3f803f80
         v_mov_b32 v11, 0x3f803f80
         v_lshlrev_b32 v6, 2, v1
         s_waitcnt lgkmcnt(0)""")
    srd(b, 24, 12, WS_END)
    b("""s_cmp_ge_u32 s14, 176
         s_cbranch_scc1 K2_RL3""")
    def pair(pr, base, offs, dst):
        for jr in range(8):
            pr(f"buffer_load_dword v{base+jr}, v4, s[16:19], s{40+jr} offen offset:{offs}")
    def pair_out(pr, base, dst):
        for k in range(4):
            pr(f"v_perm_b32 v{dst+k}, v{base+2*k+1}, v{base+2*k}, s36")
        for k in range(4):
            pr(f"v_perm_b32 v{dst+4+k}, v{base+2*k+1}, v{base+2*k}, s37")
    def stores(pr, nf, cs_label):
        for f in range(nf):
            if f == 4:
                pr("s_add_u32 s35, s35, 4096")
            pr(f"buffer_store_dwordx4 {vr(40+4*f,4)}, v3, s[24:27], s35 offen offset:{(f%4)*1024} sc1")
    def csum(pr, nf):
        for f in range(nf):
            pr(f"{MF} {vr(64+4*f,4)}, v[8:11], {vr(40+4*f,4)}, 0")
        pr("s_mov_b64 exec, 0xffff")
        for f in range(nf):
            pr(f"buffer_atomic_add_f32 v{64+4*f}, v6, s[24:27], s34 offen offset:{64*f}")
    a = Prog()
    a(f"""s_mov_b32 s16, s4
          s_mov_b32 s17, s5
          s_mov_b32 s18, {640*640*2}
          s_mov_b32 s19, 0x20000
          s_mov_b32 s20, {W1P}
          s_mov_b32 s21, 20
          s_mov_b32 s22, s14
          s_cmp_ge_u32 s14, 40
          s_cselect_b32 s16, s6, s16
          s_cselect_b32 s17, s7, s17
          s_cselect_b32 s20, {W2P}, s20
          s_cselect_b32 s23, 40, 0
          s_cmp_ge_u32 s14, 80
          s_cselect_b32 s16, s10, s16
          s_cselect_b32 s17, s11, s17
          s_cselect_b32 s18, {1536*640*2}, s18
          s_cselect_b32 s20, {W4P}, s20
          s_cselect_b32 s21, 48, s21
          s_cselect_b32 s23, 80, s23
          s_sub_u32 s22, s22, s23
          s_and_b32 s28, s22, 3
          s_lshr_b32 s29, s22, 2
          s_lshl_b32 s29, s29, 1
          s_add_u32 s29, s29, s31
          v_mul_u32_u24 v5, {8*1280}, v2
          v_lshl_add_u32 v4, v1, 2, v5
          v_lshl_add_u32 v5, v1, 1, v5
          s_mul_i32 s40, s29, {32*1280}
          s_mul_i32 s32, s28, 320
          s_add_u32 s40, s40, s32
          s_lshl_b32 s33, s30, 5
          s_add_u32 s33, s33, 128
          v_add_u32 v5, s33, v5
          s_mul_i32 s33, s30, 192
          v_add_u32 v4, s33, v4""")
    for jr in range(1, 8):
        a(f"s_add_u32 s{40+jr}, s{39+jr}, 1280")
    pair(a, 16, 0, 40); pair(a, 24, 64, 48)
    for jr in range(8):
        a(f"buffer_load_ushort v{32+jr}, v5, s[16:19], s{40+jr} offen")
    a(f"""s_lshl_b32 s32, s28, 1
          s_add_u32 s32, s32, s30
          s_mul_i32 s35, s32, s21
          s_add_u32 s35, s35, s29
          s_mul_i32 s35, s35, 5120
          s_add_u32 s35, s35, s20
          s_mul_i32 s34, s32, 320
          s_add_u32 s34, s34, {CS}""")
    pair_out(a, 16, 40); pair_out(a, 24, 48)
    for k in range(4):
        a(f"v_lshl_or_b32 v{56+k}, v{32+2*k+1}, 16, v{32+2*k}")
    stores(a, 5, None)
    a("s_cmp_ge_u32 s14, 40\ns_cbranch_scc1 K2_END")
    csum(a, 5)
    a("s_endpgm")
    c = Prog()
    c(f"""K2_RL3:
          s_mov_b32 s16, s8
          s_mov_b32 s17, s9
          s_mov_b32 s18, {640*1536*2}
          s_mov_b32 s19, 0x20000
          s_sub_u32 s22, s14, 176
          s_and_b32 s28, s22, 7
          s_lshr_b32 s29, s22, 3
          s_lshl_b32 s29, s29, 1
          s_add_u32 s29, s29, s31
          v_mul_u32_u24 v5, {8*3072}, v2
          v_lshl_add_u32 v4, v1, 2, v5
          s_lshl_b32 s32, s28, 1
          s_add_u32 s32, s32, s30
          s_mul_i32 s40, s29, {32*3072}
          s_mul_i32 s33, s32, 192
          s_add_u32 s40, s40, s33""")
    for jr in range(1, 8):
        c(f"s_add_u32 s{40+jr}, s{39+jr}, 3072")
    pair(c, 16, 0, 40); pair(c, 24, 64, 48); pair(c, 32, 128, 56)
    c(f"""s_mul_i32 s35, s32, 20
          s_add_u32 s35, s35, s29
          s_mul_i32 s35, s35, 6144
          s_add_u32 s35, s35, {W3P}
          s_mul_i32 s34, s32, 384
          s_add_u32 s34, s34, {CS + 40*64}""")
    pair_out(c, 16, 40); pair_out(c, 24, 48); pair_out(c, 32, 56)
    stores(c, 6, None)
    csum(c, 6)
    c("K2_END:")
    return [b, a, c]
```

```python
import sys
from build import *
from k1 import k1
from k2 import k2
from km import km
ks = []
pr, vg, lds = k1()
ks.append(("k1_kernel", pr, vg, 0, 256, 256, lds))
pr, vg, lds = k2()
ks.append(("k2_kernel", pr, vg, 0, 416, 256, lds))
pr, vg, ag, lds = km()
ks.append(("km_kernel", pr, vg, ag, 256, 256, lds))
build(ks, sys.argv[1] if len(sys.argv) > 1 else "cur.s")
```

```python
import re

import os
PROFILE = bool(os.environ.get("PROFILE"))
TRANS = ("v_exp_f32", "v_log_f32", "v_rcp_f32", "v_rsq_f32", "v_sqrt_f32", "v_sin_f32", "v_cos_f32")

def _regs(tok):
    tok = tok.strip()
    if tok.startswith("-"):
        tok = tok[1:]
    m = re.fullmatch(r"abs\((.*)\)", tok)
    if m:
        tok = m.group(1)
    m = re.fullmatch(r"\|(.*)\|", tok)
    if m:
        tok = m.group(1)
    m = re.fullmatch(r"([vsa])(\d+)", tok)
    if m:
        return [(m.group(1), int(m.group(2)))]
    m = re.fullmatch(r"([vsa])\[(\d+):(\d+)\]", tok)
    if m:
        return [(m.group(1), i) for i in range(int(m.group(2)), int(m.group(3)) + 1)]
    if tok == "vcc":
        return [("vcc", 0)]
    if tok == "exec":
        return [("exec", 0)]
    if tok == "m0":
        return [("m0", 0)]
    return []

class Ins:
    __slots__ = ("text", "op", "w", "r", "cls", "passes", "srcc", "srcab", "dpp", "wide", "lds_dma", "tag")
    def __init__(self, text, tag=None):
        self.text = text
        self.tag = tag
        body = text.split(";")[0].strip()
        parts = body.split(None, 1)
        op = parts[0]
        self.op = op
        rest = parts[1] if len(parts) > 1 else ""
        toks = []
        depth = 0
        cur = ""
        for ch in rest:
            if ch in "[(":
                depth += 1
            if ch in "])":
                depth -= 1
            if ch == "," and depth == 0:
                toks.append(cur.strip()); cur = ""
            else:
                cur += ch
        if cur.strip():
            toks.append(cur.strip())
        mods = ""
        if toks:
            last = toks[-1].split(None, 1)
            toks[-1] = last[0]
            if len(last) > 1:
                mods = last[1]
        R = [_regs(t) for t in toks]
        self.w, self.r = [], []
        self.passes = 0
        self.srcc, self.srcab = [], []
        self.dpp = ("row_" in mods) or ("quad_perm" in mods) or ("wave_" in mods) or op.endswith("_dpp")
        self.wide = False
        self.lds_dma = False
        flat = lambda L: [x for l in L for x in l]
        if op.startswith("v_mfma"):
            self.cls = "mfma"
            self.passes = 8 if "32x32" in op else 4
            self.w = R[0]; self.r = flat(R[1:]); self.srcc = R[3]; self.srcab = R[1] + R[2]
        elif op.startswith("v_"):
            self.cls = "trans" if op.replace("_e32", "").replace("_e64", "") in TRANS else ("dot" if op.startswith("v_dot") else "valu")
            self.w = list(R[0]); self.r = flat(R[1:])
            if op.startswith(("v_fmac", "v_pk_fmac", "v_dot2c", "v_writelane")):
                self.r += R[0]
            if op.startswith(("v_permlane16_swap", "v_permlane32_swap", "v_swap")):
                self.w = R[0] + R[1]; self.r = R[0] + R[1]
            if op.startswith(("v_add_co", "v_sub_co", "v_addc_co", "v_subb_co")):
                self.w = R[0] + R[1]; self.r = flat(R[2:])
            if self.dpp:
                self.r += R[0]
            if op.startswith("v_cndmask") and len(toks) == 3:
                self.r += [("vcc", 0)]
        elif op.startswith(("buffer_load", "global_load")):
            self.cls = "vmem"
            if " lds" in (" " + mods) or "_lds_" in op:
                self.lds_dma = True
                self.r = flat(R) + [("m0", 0)]
            else:
                self.w = R[0]; self.r = flat(R[1:])
        elif op.startswith(("buffer_store", "global_store", "buffer_atomic", "global_atomic")):
            self.cls = "vmem"
            self.r = flat(R)
            self.wide = op.endswith(("x3", "x4"))
            if "atomic" in op and "sc0" in mods:
                self.w = R[0]
        elif op.startswith(("buffer_inv", "buffer_wbl2")):
            self.cls = "vmem"
        elif op.startswith("ds_"):
            self.cls = "ds"
            if op.startswith(("ds_read", "ds_bpermute", "ds_permute", "ds_swizzle")):
                self.w = R[0]; self.r = flat(R[1:])
            else:
                self.r = flat(R)
        elif op.startswith(("s_load", "s_memtime", "s_memrealtime", "s_buffer_load")):
            self.cls = "smem"
            self.w = R[0]; self.r = flat(R[1:])
        elif op in ("s_waitcnt", "s_nop", "s_barrier", "s_endpgm", "s_sleep", "s_setprio", "s_branch") or op.startswith("s_cbranch"):
            self.cls = "ctl"
        elif op.startswith("s_cmp") or op.startswith("s_bitcmp"):
            self.cls = "salu"
            self.r = flat(R)
        elif op.startswith("s_"):
            self.cls = "salu"
            self.w = list(R[0]); self.r = flat(R[1:])
            if "saveexec" in op:
                self.w += [("exec", 0)]
            if op.startswith(("s_addk", "s_mulk")):
                self.r += R[0]
        elif op.endswith(":"):
            self.cls = "label"
        else:
            raise ValueError("unknown instruction: " + text)

def is_valu(i):
    return i.cls in ("valu", "trans", "dot")

class Prog:
    def __init__(self):
        self.items = []
    def __call__(self, text, tag=None):
        for line in text.strip().split("\n"):
            line = line.strip()
            if line:
                self.items.append(Ins(line, tag))
        return self
    def wait_tag(self, tag):
        self.items.append(("wait_tag", tag))
    def wait_lds(self):
        self.items.append(Ins("s_waitcnt lgkmcnt(0)"))
    def extend(self, other):
        self.items.extend(other.items)
    def stampb(self, i):
        if os.environ.get("PSET") == "back":
            self.stamp(i, True)
    def stamp(self, i, force=False):
        if os.environ.get("PSET") == "back" and 0 < i < 15 and not force:
            return
        if PROFILE:
            assert i < 30
            self.items.append(("fence",))
            self.items.append(Ins("s_memrealtime s[100:101]"))
            self.items.append(Ins("s_waitcnt lgkmcnt(0)"))
            self.items.append(Ins(f"s_mov_b32 s{70+i}, s100"))
            self.items.append(("fence",))
    def stamps_out(self, n, srd=24):
        if not PROFILE:
            return
        from layout import PROF
        self("s_waitcnt vmcnt(0)")
        self.stamp(n)
        self("s_memrealtime s[100:101]\ns_waitcnt lgkmcnt(0)")
        n += 1
        Prog._lab = getattr(Prog, "_lab", 0) + 1
        lab = f"PROF_SKIP{Prog._lab}"
        self(f"s_mov_b64 exec, -1\nv_mov_b32 v1, 0\nv_cmp_eq_u32 vcc, 0, v0\ns_and_saveexec_b64 s[66:67], vcc\ns_cbranch_execz {lab}")
        self(f"s_lshl_b32 s68, s2, 7\ns_add_u32 s68, s68, {PROF}")
        for i in range(n + 1):
            self(f"v_mov_b32 v2, s{70+i}\nbuffer_store_dword v2, v1, s[{srd}:{srd+3}], s68 offen offset:{4*i}")
        self(f"{lab}:")
    def raw(self, text):
        self.items.append(("raw", text))
    def comment(self, c):
        self.items.append(("comment", c))

def interleave(*progs, weights=None):
    out = Prog()
    n = [len(p.items) for p in progs]
    pos = [0] * len(progs)
    total = sum(n)
    for _ in range(total):
        best, bk = None, None
        for k in range(len(progs)):
            if pos[k] < n[k]:
                frac = (pos[k] + 0.5) / n[k]
                if best is None or frac < best:
                    best, bk = frac, k
        out.items.append(progs[bk].items[pos[bk]])
        pos[bk] += 1
    return out

def _need(prev, cur):
    n = 0
    pw, cw, cr = set(prev.w), set(cur.w), set(cur.r)
    vec = lambda s: {x for x in s if x[0] in "va"}
    sc = lambda s: {x for x in s if x[0] in ("s", "vcc")}
    if prev.cls == "mfma":
        big = 8 if prev.passes == 4 else 12
        if cur.cls == "mfma":
            if pw & set(cur.srcab):
                n = max(n, big)
            if pw & set(cur.srcc):
                if not (prev.w == cur.srcc and prev.passes == cur.passes):
                    n = max(n, big - 2)
            elif pw & cw:
                n = max(n, big)
        elif is_valu(cur) or cur.cls in ("vmem", "ds"):
            if pw & (cr | cw):
                n = max(n, big)
            if is_valu(cur) and set(prev.srcc) & cw:
                n = max(n, 3 if prev.passes == 4 else 7)
            if cur.cls in ("vmem", "ds") and set(prev.srcc) & cw:
                n = max(n, 3 if prev.passes == 4 else 7)
    if is_valu(prev):
        if cur.cls == "mfma" and vec(pw) & cr:
            n = max(n, 3 if prev.cls == "dot" else 2)
        if prev.cls == "trans" and is_valu(cur) and cur.cls != "trans" and pw & cr:
            n = max(n, 1)
        if prev.cls == "dot" and (pw & (cr | cw)):
            if not (cur.op == prev.op and not (pw & set(cur.r[:2]))):
                n = max(n, 3)
        if is_valu(cur) and cur.dpp and vec(pw) & cr:
            n = max(n, 2)
        if cur.op.startswith("v_permlane") and vec(pw) & cr:
            n = max(n, 2)
        if cur.op.startswith(("v_readlane", "v_readfirstlane")) and vec(pw) & cr:
            n = max(n, 1)
        if sc(pw):
            if is_valu(cur) and sc(pw) & cr:
                n = max(n, 4 if cur.op.startswith(("v_readlane", "v_writelane")) else 2)
            if cur.cls == "vmem" and sc(pw) & cr:
                n = max(n, 5)
            if cur.cls in ("salu", "smem") and sc(pw) & cr:
                n = max(n, 1)
        if ("sdwa" in prev.text or "op_sel:" in prev.text and "pk_" not in prev.op) and is_valu(cur) and pw & (cr | cw):
            n = max(n, 1)
    if prev.cls == "vmem" and prev.wide and vec(set(prev.r)) & cw:
        n = max(n, 2)
    if prev.cls == "ds" and prev.op.endswith(("b128", "b96")) and not prev.w and vec(set(prev.r)) & cw:
        n = max(n, 2)
    if prev.cls == "salu" and ("m0", 0) in pw and cur.lds_dma:
        n = max(n, 1)
    return n

LG_SLACK = 3
def finalize(prog, stats=None):
    out = []
    lines = []
    vm = []
    lg = []
    def emit(i):
        out.append(i); lines.append("  " + i.text if i.cls != "label" else i.text)
    def states(i):
        if i.op == "s_nop":
            return int(i.text.split()[1], 0) + 1
        return 0 if i.cls == "label" else 1
    def wait(vn=None, ln=None):
        t = "s_waitcnt"
        if vn is not None:
            t += f" vmcnt({min(vn, 63)})"
            del vm[:len(vm) - min(vn, 63) if min(vn, 63) < len(vm) else 0]
        if ln is not None:
            t += f" lgkmcnt({min(ln, 15)})"
            del lg[:len(lg) - min(ln, 15) if min(ln, 15) < len(lg) else 0]
        emit(Ins(t))
    for it in prog.items:
        if isinstance(it, tuple):
            if it[0] == "comment":
                lines.append("  ; " + it[1])
            elif it[0] == "raw":
                emit(Ins("s_nop 4"))
                for ln in it[1].strip().split("\n"):
                    ln = ln.strip()
                    lines.append(ln if ln.endswith(":") else "  " + ln)
                emit(Ins("s_nop 4"))
            elif it[0] == "wait_tag":
                idx = max((k for k, e in enumerate(vm) if e[1] == it[1]), default=-1)
                if idx >= 0:
                    wait(vn=len(vm) - 1 - idx)
            continue
        i = it
        if i.op == "s_waitcnt":
            m = re.search(r"vmcnt\((\d+)\)", i.text)
            if m:
                k = int(m.group(1)); del vm[:max(0, len(vm) - k)]
            m = re.search(r"lgkmcnt\((\d+)\)", i.text)
            if m:
                k = int(m.group(1)); del lg[:max(0, len(lg) - k)]
            emit(i); continue
        touched = set(i.r) | set(i.w)
        vn = ln = None
        idx = max((k for k, e in enumerate(vm) if e[0] & touched), default=-1)
        if idx >= 0:
            vn = len(vm) - 1 - idx
        idx = max((k for k, e in enumerate(lg) if e[0] & touched), default=-1)
        if idx >= 0:
            ln = 0 if any(e[1] for e in lg) else len(lg) - 1 - idx
            if ln >= 8:
                ln -= LG_SLACK
        if i.cls == "vmem" and len(vm) >= 63:
            vn = min(vn if vn is not None else 62, 62)
        if vn is not None or ln is not None:
            wait(vn, ln)
        if i.cls not in ("label", "ctl"):
            need, dist = 0, 0
            for p in reversed(out[-24:]):
                if p.cls not in ("ctl", "label"):
                    need = max(need, _need(p, i) - dist)
                dist += states(p)
                if dist >= 14:
                    break
            while need > 0:
                k = min(need, 16)
                emit(Ins(f"s_nop {k-1}"))
                if stats is not None:
                    stats["nops"] = stats.get("nops", 0) + k
                need -= k
        emit(i)
        if i.cls == "vmem":
            vm.append((set(i.w), i.tag))
        elif i.cls == "ds":
            lg.append((set(i.w), False))
        elif i.cls == "smem":
            lg.append((set(i.w), True))
    if stats is not None:
        for i in out:
            stats[i.cls] = stats.get(i.cls, 0) + 1
    return "\n".join(lines) + "\n"

def kernel_text(name, prog, vgprs, agprs=0, sgprs=96, show=True):
    st = {}
    body = finalize(prog, st)
    if show:
        print(name, st)
    acc = (vgprs + 3) // 4 * 4
    nfv = acc + agprs if agprs else vgprs
    code = f""".text
.globl {name}
.p2align 8
.type {name},@function
{name}:
{body}  s_endpgm
"""
    desc = f""".p2align 6
.amdhsa_kernel {name}
  .amdhsa_next_free_vgpr {nfv}
  .amdhsa_next_free_sgpr {sgprs}
  .amdhsa_accum_offset {acc}
  .amdhsa_group_segment_fixed_size 0
  .amdhsa_kernarg_size 88
  .amdhsa_user_sgpr_count 2
  .amdhsa_user_sgpr_kernarg_segment_ptr 1
  .amdhsa_system_sgpr_workgroup_id_x 1
.end_amdhsa_kernel
"""
    return code, desc

class Alloc:
    def __init__(self, start, limit, kind="v"):
        self.n, self.limit, self.kind = start, limit, kind
        self.hi = start
    def get(self, count=1, align=1):
        self.n = (self.n + align - 1) // align * align
        r = self.n
        self.n += count
        self.hi = max(self.hi, self.n)
        assert self.n <= self.limit, f"out of {self.kind} registers"
        return r
    def mark(self):
        return self.n
    def release(self, m):
        self.n = m

def vr(b, n, k="v"):
    return f"{k}{b}" if n == 1 else f"{k}[{b}:{b+n-1}]"

_NO_SCC_W = ("s_mov", "s_mul_i32", "s_cselect", "s_movk", "s_mulk", "s_getreg", "s_mul_hi", "s_getpc", "s_setprio")
def _rw(i):
    r, w = set(i.r), set(i.w)
    if i.cls == "salu":
        if not i.op.startswith(_NO_SCC_W):
            w.add(("scc", 0))
        if i.op.startswith(("s_cselect", "s_addc", "s_subb")):
            r.add(("scc", 0))
    if i.cls in ("valu", "trans", "dot", "mfma", "vmem", "ds"):
        r.add(("exec", 0))
    if i.cls == "vmem":
        w.add(("vmq", 0))
    if i.cls == "smem":
        w.add(("smq", 0))
    if i.cls == "ds":
        region = i.tag or "lds"
        if i.w:
            r.add(("ldsmem", region))
        else:
            w.add(("ldsmem", region))
    return r, w

def _issue(i):
    if i.cls == "mfma": return 8
    if i.cls == "trans": return 8
    if i.cls in ("valu", "dot"): return 4.2
    return 4

def _lat(p, c, kind):
    if kind != "raw":
        return max(_issue(p), 4 * (_need(p, c) + 1))
    if p.cls == "mfma":
        if c.cls == "mfma" and p.w == c.srcc and not (set(p.w) & set(c.srcab)):
            return 4 * p.passes
        return 4 * p.passes + 24
    if p.cls == "ds": return 130
    if p.cls == "vmem": return 700
    if p.cls == "smem": return 900
    return max(_issue(p), 4 * (_need(p, c) + 1))

VM_GAP = 64
def _sched_region(ins):
    n = len(ins)
    if n <= 2:
        return ins
    rw = [_rw(i) for i in ins]
    preds = [dict() for _ in range(n)]
    lastw, readers = {}, {}
    for k, (r, w) in enumerate(rw):
        for x in r:
            if x in lastw:
                j = lastw[x]
                kind = "raw" if x[0] in ("v", "a", "s", "vcc", "m0") else "ord"
                preds[k][j] = max(preds[k].get(j, 0), _lat(ins[j], ins[k], kind))
        for x in w:
            if x in lastw:
                j = lastw[x]
                kind = "raw" if (x[0] in ("v", "a", "s") and ins[j].cls in ("mfma", "ds", "vmem", "smem") and not (ins[k].cls == "mfma" and ins[j].w == ins[k].srcc)) else "ord"
                preds[k][j] = max(preds[k].get(j, 0), _lat(ins[j], ins[k], kind))
            for j in readers.get(x, ()):
                if j != k:
                    preds[k][j] = max(preds[k].get(j, 0), _lat(ins[j], ins[k], "ord"))
        for x in r:
            readers.setdefault(x, []).append(k)
        for x in w:
            lastw[x] = k
            readers[x] = []
    succs = [[] for _ in range(n)]
    for k in range(n):
        for j, l in preds[k].items():
            succs[j].append((k, l))
    prio = [0.0] * n
    for k in range(n - 1, -1, -1):
        prio[k] = _issue(ins[k]) + max((l + prio[s] - _issue(ins[k]) for s, l in succs[k]), default=0)
    slow = [i.cls == "dot" or (i.op.startswith("v_pk_") and i.op.endswith(("f32", "b32"))) for i in ins]
    feeds_vm = [i.cls == "vmem" for i in ins]
    for k in range(n - 1, -1, -1):
        if ins[k].cls == "salu" and any(feeds_vm[s] for s, _ in succs[k]):
            feeds_vm[k] = True
    npred = [len(p) for p in preds]
    ready_t = [0.0] * n
    avail = [k for k in range(n) if npred[k] == 0]
    t, pipe_free, vm_free = 0.0, 0.0, 0.0
    order = []
    while avail:
        def start(k):
            s = max(t, ready_t[k])
            if ins[k].cls == "mfma":
                s = max(s, pipe_free)
            if ins[k].cls == "vmem":
                s = max(s, vm_free)
            if slow[k]:
                s = max(s, pipe_free + 12 if pipe_free else 0)
            return s
        k = min(avail, key=lambda k: (start(k) - t > 2.0, start(k) if start(k) - t > 2.0 else 0, not feeds_vm[k], -prio[k], k))
        s = start(k)
        avail.remove(k)
        order.append(k)
        t = s + _issue(ins[k])
        if ins[k].cls == "mfma":
            pipe_free = s + 4 * ins[k].passes
        if ins[k].cls == "vmem":
            vm_free = s + (VM_GAP if ins[k].op.endswith("x4") else VM_GAP / 2)
        for c, l in succs[k]:
            ready_t[c] = max(ready_t[c], s + l)
            npred[c] -= 1
            if npred[c] == 0:
                avail.append(c)
    assert len(order) == n
    _sched_region.last_t = t
    return [ins[k] for k in order]

def schedule(prog, verbose=None):
    out = Prog()
    cur = []
    def flush():
        if cur:
            out.items.extend(_sched_region(list(cur)))
            if verbose and len(cur) > 2:
                import sys
                print(f"  [{verbose}] region of {len(cur)} instrs: est {_sched_region.last_t:.0f} cycles", file=sys.stderr)
            cur.clear()
    for it in prog.items:
        if isinstance(it, tuple) or it.cls in ("ctl", "label"):
            flush(); out.items.append(it)
        else:
            cur.append(it)
    flush()
    return out

def code_prefetch(p, first, last, vt, vd, sp=60, back=False):
    Prog._lab = getattr(Prog, "_lab", 0) + 1
    lab = f"PF{Prog._lab}"
    p(f"s_getpc_b64 s[{sp}:{sp+1}]")
    p(f"{lab}:")
    if first is None:
        first = lab
    elif back:
        p(f"s_sub_u32 s{sp}, s{sp}, {lab}-{first}\ns_subb_u32 s{sp+1}, s{sp+1}, 0")
    else:
        p(f"s_add_u32 s{sp}, s{sp}, {first}-{lab}\ns_addc_u32 s{sp+1}, s{sp+1}, 0")
    p(f"""v_lshlrev_b32 v{vt}, 7, v0
          v_min_u32 v{vt}, {last}-{first}, v{vt}
          global_load_dword v{vd}, v{vt}, s[{sp}:{sp+1}]""")
```

```python
from common import *
import os
EXP = os.environ.get('EXP', '').split(',')
def knob(name, default):
    return int(os.environ.get(name, default))

NTW = " nt"
NTR = " nt"
NTX = " nt" if "ntx" in EXP else ""
LROW = 2816
NWF = knob("NWF", 16)
AW, AX = 0, 200
_lab = [0]
def label(s):
    _lab[0] += 1
    return f"{s}{_lab[0]}"

def arrive(p, mask, voff, soff, vone):
    p(f"""s_mov_b64 exec, {mask}
          buffer_atomic_add v{vone}, v{voff}, s[24:27], {soff} offen sc1
          s_mov_b64 exec, -1""")

def poll0(p, voff, soff, target, vt):
    L = label("POLL")
    p.raw(f"""s_cmp_lg_u32 s3, 0
              s_cbranch_scc1 {L}_OUT
              s_mov_b64 exec, 0xffff
              s_movk_i32 s22, 0x2000
              {L}:
              v_mov_b32 v{vt}, 0
              buffer_atomic_add v{vt}, v{voff}, s[24:27], {soff} offen sc0 sc1
              s_waitcnt vmcnt(0)
              v_cmp_gt_u32 vcc, {target}, v{vt}
              s_sub_u32 s22, s22, 1
              s_cbranch_scc1 {L}_END
              s_cbranch_vccnz {L}
              {L}_END:
              s_mov_b64 exec, -1
              {L}_OUT:""")

def check_issue(p, vd, voff, soff):
    p(f"buffer_load_dword v{vd}, v{voff}, s[24:27], {soff} offen sc1")
def check_done(p, vd, voff, soff, target):
    L = label("CHK")
    p(f"v_cmp_gt_u32 vcc, {target}, v{vd}")
    p.raw(f"""s_cbranch_vccz {L}_OUT
              s_mov_b64 exec, 0xffff
              s_movk_i32 s22, 0x2000
              {L}:
              v_mov_b32 v{vd}, 0
              buffer_atomic_add v{vd}, v{voff}, s[24:27], {soff} offen sc0 sc1
              s_waitcnt vmcnt(0)
              v_cmp_gt_u32 vcc, {target}, v{vd}
              s_sub_u32 s22, s22, 1
              s_cbranch_scc1 {L}_END
              s_cbranch_vccnz {L}
              {L}_END:
              s_mov_b64 exec, -1
              {L}_OUT:""")
def acheck_issue(p, vd, voff, soff):
    p(f"""v_mov_b32 v{vd}, -1
          s_mov_b64 exec, s[62:63]
          v_mov_b32 v{vd}, 0
          buffer_atomic_add v{vd}, v{voff}, s[24:27], {soff} offen sc0 sc1
          s_mov_b64 exec, -1""")

class Ctx:
    pass

def head():
    p = Prog()
    p("s_cmp_ge_u32 s2, 256\ns_cbranch_scc1 KM_END")
    p.stamp(0)
    p("""s_load_dwordx4 s[4:7], s[0:1], 0
         s_load_dwordx2 s[8:9], s[0:1], 16
         s_load_dwordx4 s[48:51], s[0:1], 72
         s_load_dwordx8 s[52:59], s[0:1], 32
         s_cmp_ge_u32 s2, 160
         s_cbranch_scc1 SPARE""")
    return p

def phase1(p, V, spare, early):
    c = Ctx()
    code_prefetch(p, None, "CODE_END" if spare else "JOIN", 254, 255)
    vc, vq, vl, vl16, vone, varr, vrep, vsh = (V.get() for _ in range(8))
    c.vc, c.vq, c.vl, c.vl16, c.vone, c.varr, c.vrep, c.vsh = vc, vq, vl, vl16, vone, varr, vrep, vsh
    c.t = t0, t1, t2, t3 = [V.get() for _ in range(4)]
    c.pers = early(None, V, c)
    c.mark = V.mark()
    vxo, vwo = V.get(), V.get()
    Z = V.get(4, 4)
    p(f"""v_and_b32 v{vc}, 15, v0
          v_bfe_u32 v{vq}, v0, 4, 2
          v_and_b32 v{vl}, 63, v0
          v_lshrrev_b32 v{t0}, 6, v0
          v_readfirstlane_b32 s3, v{t0}
          v_mul_u32_u24 v{vxo}, 320, v{vq}
          v_lshl_add_u32 v{vxo}, v{vc}, 2, v{vxo}
          v_lshlrev_b32 v{vwo}, 1, v{vl}
          v_lshlrev_b32 v{vl16}, 4, v{vl}
          s_and_b32 s28, s2, 7
          s_lshr_b32 s29, s2, 3
          s_lshl_b32 s28, s28, 3
          s_lshl_b32 s30, s3, 1
          s_add_u32 s28, s28, s30
          s_lshl_b32 s28, s28, 5
          s_add_u32 s28, s28, s29
          s_mul_i32 s28, s28, 1280
          s_add_u32 s29, s28, {32*1280}
          s_lshr_b32 s31, s2, 2
          s_and_b32 s32, s2, 3
          s_lshl_b32 s32, s32, 3
          s_add_u32 s32, s32, s30
          s_lshl_b32 s32, s32, 6
          s_add_u32 s31, s31, s32
          s_mul_i32 s31, s31, 642
          s_add_u32 s31, s31, 2
          s_add_u32 s32, s31, {64*642}
          s_cmp_eq_u32 s3, 0
          s_cselect_b32 s62, 0xffff, 0
          s_cselect_b32 s64, 1, 0
          s_mov_b32 s63, 0
          s_mov_b32 s65, 0""")
    if not spare:
        p(f"""v_mov_b32 v{Z}, 0
              v_mov_b32 v{Z+1}, 0
              v_mov_b32 v{Z+2}, 0
              v_mov_b32 v{Z+3}, 0
              s_lshl_b32 s39, s2, 12
              s_add_u32 s39, s39, {CS}
              s_lshl_b32 s33, s3, 8
              s_add_u32 s33, s33, s2
              s_cmp_lt_u32 s33, {NZ}
              s_cselect_b64 s[46:47], -1, 0""")
    p("s_waitcnt lgkmcnt(0)")
    srd(p, 12, 4, S * D * 2)
    srd(p, 24, 50, WS_END)
    p.stamp(1)
    if not spare:
        p("s_mov_b64 exec, s[46:47]")
        for i in range(4):
            p(f"buffer_store_dwordx4 {vr(Z,4)}, v{vl16}, s[24:27], s39 offen offset:{1024*i} sc1", tag="z")
        p("s_mov_b64 exec, -1")
    L = [V.get(5), V.get(5)]
    for rho in range(2):
        for j in range(5):
            p(f"buffer_load_dword v{L[rho]+j}, v{vxo}, s[12:15], s{28+rho} offen offset:{64*j}{NTX}")
    srd(p, 16, 6, S * 321 * 2)
    srd(p, 20, 8, S * 321 * 2)
    WR = [0, 5]; WI = [10, 15]
    def wloads():
        for rho in range(2):
            for j in range(5):
                p(f"buffer_load_ushort a{WR[rho]+j}, v{vwo}, s[16:19], s{31+rho} offen offset:{128*j}{NTW}")
                p(f"buffer_load_ushort a{WI[rho]+j}, v{vwo}, s[20:23], s{31+rho} offen offset:{128*j}{NTW}", tag="wl")
    if "wearly" in EXP:
        wloads()
    fc, f5q, f8q = (V.get() for _ in range(3))
    B1re, B1im = V.get(4, 4), V.get(4, 4)
    twc, tws = V.get(8, 2), V.get(8, 2)
    A2P, A2Q = V.get(8, 4), V.get(8, 4)
    A = [[V.get(4, 4), V.get(4, 4)] for _ in range(2)]
    D1 = [[[V.get(4, 4) for _ in range(2)] for _ in range(2)] for _ in range(2)]
    tc, ts = D1[0][0][0], D1[0][0][0] + 8
    p(f"""v_cvt_f32_u32 v{fc}, v{vc}
          v_cvt_f32_u32 v{f8q}, v{vq}
          v_mul_f32 v{f5q}, {f32(0.25)}, v{f8q}
          v_mul_f32 v{f8q}, {f32(8.0)}, v{f8q}
          v_mul_f32 v{f5q}, v{f5q}, v{fc}
          v_mul_f32 v{f8q}, v{f8q}, v{fc}""")
    for j in range(5):
        p(f"""v_fmamk_f32 v{t0}, v{fc}, {f32(j/20)}, v{f5q}
              v_cos_f32 v{tc+j}, v{t0}
              v_sin_f32 v{ts+j}, v{t0}""")
    p(f"""v_cvt_pk_bf16_f32 v{B1re}, v{tc}, v{tc+1}
          v_cvt_pk_bf16_f32 v{B1re+1}, v{tc+2}, v{tc+3}
          v_cvt_pk_bf16_f32 v{B1re+2}, v{tc+4}, 0
          v_mov_b32 v{B1re+3}, 0
          v_cvt_pk_bf16_f32 v{B1im}, -v{ts}, -v{ts+1}
          v_cvt_pk_bf16_f32 v{B1im+1}, -v{ts+2}, -v{ts+3}
          v_cvt_pk_bf16_f32 v{B1im+2}, -v{ts+4}, 0
          v_mov_b32 v{B1im+3}, 0""")
    for t in range(2):
        for r in range(4):
            m = 2 * r + t
            p(f"""v_fmamk_f32 v{t0}, v{fc}, {f32(float(m))}, v{f8q}
                  v_mul_f32 v{t1}, {f32(1/640)}, v{t0}
                  v_mul_f32 v{t0}, {f32(1/32)}, v{t0}
                  v_cos_f32 v{twc+4*t+r}, v{t1}
                  v_sin_f32 v{tws+4*t+r}, v{t1}
                  v_cos_f32 v{t2}, v{t0}
                  v_sin_f32 v{t3}, v{t0}
                  v_cvt_pk_bf16_f32 v{A2P+4*t+r}, v{t2}, v{t3}
                  v_cvt_pk_bf16_f32 v{A2Q+4*t+r}, -v{t3}, v{t2}""")
    va0, va1, vaw, vgo, vis0, vhalf = (V.get() for _ in range(6))
    vrd = V.get(5)
    p(f"""s_mul_i32 s33, s3, {2*LROW}
          s_lshr_b32 s34, s3, 1
          s_lshl_b32 s34, s34, 6
          s_add_u32 s33, s33, s34
          v_add_u32 v{va0}, s33, v{vxo}
          s_add_u32 s34, s33, {260*4}
          v_sub_u32 v{va1}, s34, v{vxo}
          s_add_u32 s34, s33, {321*4}
          v_lshl_add_u32 v{vaw}, v{vl}, 2, s34
          v_lshlrev_b32 v{vgo}, 4, v0
          s_mul_i32 s35, s2, 20480
          s_mov_b32 s36, 0x05040100
          s_mov_b32 s37, 0x07060302
          s_mov_b32 s38, 0x3f803f80
          v_cmp_eq_u32 vcc, 0, v{vc}
          v_mov_b32 v{t0}, {f32(-20.0/640)}
          v_cndmask_b32 v{vis0}, 0, v{t0}, vcc
          v_cmp_eq_u32 vcc, 0, v{vl}
          v_cndmask_b32 v{vhalf}, 1.0, 0.5, vcc
          v_and_b32 v{t0}, 1, v0
          v_mul_u32_u24 v{t0}, {4*LROW+64}, v{t0}
          v_bfe_u32 v{t1}, v0, 1, 1
          v_mul_u32_u24 v{t1}, 160, v{t1}
          v_add3_u32 v{t0}, v{t0}, v{t1}, 4
          v_lshrrev_b32 v{t1}, 2, v0""")
    for j in range(5):
        p(f"""v_add_u32 v{t2}, {64*j}, v{t1}
              v_mul_u32_u24 v{t3}, 1639, v{t2}
              v_lshrrev_b32 v{t3}, 16, v{t3}
              v_mul_u32_u24 v{t3}, 40, v{t3}
              v_add_u32 v{t2}, v{t2}, v{t3}
              v_lshl_add_u32 v{vrd+j}, v{t2}, 2, v{t0}""")
    p(f"""v_mov_b32 v{vone}, 1
          s_and_b32 s33, s2, 15
          s_lshl_b32 s33, s33, 7
          v_lshl_add_u32 v{varr}, v{vc}, 11, s33
          v_lshlrev_b32 v{vsh}, 7, v{vc}
          s_lshr_b32 s34, s2, 4
          s_lshl_b32 s34, s34, 11
          v_add_u32 v{vrep}, s34, v{vsh}""")
    if not spare:
        p.wait_tag("z")
        p(f"""s_and_b32 s46, s46, 1
              s_mov_b32 s47, 0
              s_mov_b64 exec, s[46:47]
              global_atomic_add v{Z}, v{vone}, s[48:49] sc1
              s_mov_b64 exec, -1""")
    if "wearly" not in EXP:
        wloads()
    early(p, V, c)
    s1 = [V.get(), V.get()]; s2 = [V.get(), V.get()]
    for rho in range(2):
        p(f"v_mov_b32 v{A[rho][0]+3}, 0\nv_mov_b32 v{A[rho][1]+3}, 0\nv_mov_b32 v{s1[rho]}, 0\nv_mov_b32 v{s2[rho]}, 0")
    p.stamp(2)
    outer = p
    p = Prog()
    for rho in range(2):
        l = L[rho]
        p(f"""v_perm_b32 v{A[rho][0]}, v{l+1}, v{l}, s36
              v_perm_b32 v{A[rho][0]+1}, v{l+3}, v{l+2}, s36
              v_and_b32 v{A[rho][0]+2}, 0xffff, v{l+4}
              v_perm_b32 v{A[rho][1]}, v{l+1}, v{l}, s37
              v_perm_b32 v{A[rho][1]+1}, v{l+3}, v{l+2}, s37
              v_lshrrev_b32 v{A[rho][1]+2}, 16, v{l+4}""")
    for rho in range(2):
        for t in range(2):
            p(f"{MF} {vr(D1[rho][t][0],4)}, {vr(A[rho][t],4)}, {vr(B1re,4)}, 0")
            p(f"{MF} {vr(D1[rho][t][1],4)}, {vr(A[rho][t],4)}, {vr(B1im,4)}, 0")
    for j in range(5):
        for rho in range(2):
            p(f"v_dot2c_f32_bf16 v{s1[rho]}, s38, v{L[rho]+j}")
            p(f"v_dot2c_f32_bf16 v{s2[rho]}, v{L[rho]+j}, v{L[rho]+j}")
    p(f"""v_permlane16_swap_b32 v{s1[0]}, v{s2[0]}
          v_permlane16_swap_b32 v{s1[1]}, v{s2[1]}
          v_add_f32 v{s1[0]}, v{s1[0]}, v{s2[0]}
          v_add_f32 v{s1[1]}, v{s1[1]}, v{s2[1]}
          v_permlane32_swap_b32 v{s1[0]}, v{s1[1]}
          v_add_f32 v{s1[0]}, v{s1[0]}, v{s1[1]}""")
    for sh in (8, 4, 2, 1):
        p(f"v_add_f32_dpp v{s1[0]}, v{s1[0]}, v{s1[0]} row_ror:{sh} row_mask:0xf bank_mask:0xf")
    p(f"""v_readlane_b32 s40, v{s1[0]}, 0
          v_readlane_b32 s41, v{s1[0]}, 16
          v_readlane_b32 s42, v{s1[0]}, 32
          v_readlane_b32 s43, v{s1[0]}, 48""")
    nmu = [V.get(2, 2), V.get(2, 2)]; rs = [V.get(2, 2), V.get(2, 2)]
    for rho in range(2):
        p(f"v_mul_f32 v{nmu[rho]}, s{40+2*rho}, v{vis0}")
    for rho in range(2):
        p(f"""v_mov_b32 v{t0+rho}, {f32(1/640)}
              v_mul_f32 v{t2+rho}, s{40+2*rho}, v{t0+rho}
              v_mul_f32 v{t0+rho}, s{41+2*rho}, v{t0+rho}
              v_fma_f32 v{t0+rho}, -v{t2+rho}, v{t2+rho}, v{t0+rho}
              v_max_f32 v{t0+rho}, 0, v{t0+rho}
              v_add_f32 v{t0+rho}, {f32(1e-5)}, v{t0+rho}
              v_rsq_f32 v{rs[rho]}, v{t0+rho}""")
    B2 = [[V.get(4, 4), V.get(4, 4)] for _ in range(2)]
    TRI = [(V.get(4, 2), V.get(4, 2)) for _ in range(2)]
    U = A
    Uim = [[D1[rho][0][1], D1[rho][1][1]] for rho in range(2)]
    for rho in range(2):
        for t in range(2):
            a, b = D1[rho][t]
            tr, ti = TRI[t]
            for h in range(2):
                c_, s_ = twc + 4*t + 2*h, tws + 4*t + 2*h
                p(f"""v_pk_fma_f32 {vr(tr+2*h,2)}, {vr(b+2*h,2)}, {vr(s_,2)}, {vr(nmu[rho],2)} op_sel_hi:[1,1,0]
                      v_pk_mul_f32 {vr(ti+2*h,2)}, {vr(b+2*h,2)}, {vr(c_,2)}
                      v_pk_fma_f32 {vr(tr+2*h,2)}, {vr(a+2*h,2)}, {vr(c_,2)}, {vr(tr+2*h,2)}
                      v_pk_fma_f32 {vr(ti+2*h,2)}, {vr(a+2*h,2)}, {vr(s_,2)}, {vr(ti+2*h,2)} neg_lo:[1,0,0] neg_hi:[1,0,0]""")
            for r in range(4):
                p(f"v_cvt_pk_bf16_f32 v{B2[rho][t]+r}, v{tr+r}, v{ti+r}")
        for t in range(2):
            p(f"{MF} {vr(U[rho][t],4)}, {vr(A2P+4*t,4)}, {vr(B2[rho][t],4)}, 0")
            p(f"{MF} {vr(Uim[rho][t],4)}, {vr(A2Q+4*t,4)}, {vr(B2[rho][t],4)}, 0")
    p("s_mov_b32 s44, 0x07ff07ff\ns_mov_b32 s45, 0x07ff07ff")
    for rho in range(2):
        o = D1[rho]
        for part, uu in ((0, U[rho]), (1, Uim[rho])):
            for h in range(2):
                tm = vr((TRI[rho][0] if part else uu[0]) + 2*h, 2)
                p(f"""v_pk_mul_f32 {tm}, {vr(uu[0]+2*h,2)}, {vr(rs[rho],2)} op_sel_hi:[1,0]
                      v_pk_fma_f32 {vr(o[0][part]+2*h,2)}, {vr(uu[1]+2*h,2)}, {vr(rs[rho],2)}, {tm} op_sel_hi:[1,0,1]
                      v_pk_fma_f32 {vr(o[1][part]+2*h,2)}, {vr(uu[1]+2*h,2)}, {vr(rs[rho],2)}, {tm} op_sel_hi:[1,0,1] neg_lo:[1,0,0] neg_hi:[1,0,0]""")
        p(f"v_mul_f32 v{o[1][0]}, v{o[1][0]}, v{vhalf}")
        for r in range(4):
            p(f"v_cvt_pk_bf16_f32 v{B2[rho][0]+r}, v{o[0][0]+r}, v{o[0][1]+r}")
            p(f"v_cvt_pk_bf16_f32 v{B2[rho][1]+r}, v{o[1][0]+r}, -v{o[1][1]+r}")
    outer.extend(schedule(p, "p1"))
    p = outer
    p.stamp(3)
    p("s_mov_b64 exec, s[44:45]")
    for rho in range(2):
        for r in range(4):
            p(f"ds_write_b32 v{va0}, v{B2[rho][0]+r} offset:{rho*LROW + 80*r}")
            p(f"ds_write_b32 v{va1}, v{B2[rho][1]+r} offset:{rho*LROW + 80*(3-r)}")
    p("s_mov_b64 exec, -1")
    p.wait_tag("wl")
    for rho in range(2):
        for j in range(5):
            p(f"ds_write_b16 v{vaw}, a{WR[rho]+j} offset:{rho*LROW + 256*j}")
            p(f"ds_write_b16 v{vaw}, a{WI[rho]+j} offset:{rho*LROW + 256*j + 2}")
    p.wait_tag("r0")
    p(f"v_mov_b32 v{Z}, 0\ns_waitcnt lgkmcnt(0)\ns_barrier")
    p.stamp(4)
    O = D1[0][0][0]
    for j in range(5):
        p(f"ds_read2st64_b32 {vr(O+4*j,2)}, v{vrd+j} offset0:0 offset1:11")
        p(f"ds_read2st64_b32 {vr(O+4*j+2,2)}, v{vrd+j} offset0:22 offset1:33")
    p(f"global_load_dword v{Z+1}, v{Z}, s[48:49] sc1")
    for j in range(5):
        p(f"buffer_store_dwordx4 {vr(O+4*j,4)}, v{vgo}, s[24:27], s35 offen sc1", tag="xs")
        if j < 4:
            p("s_add_u32 s35, s35, 4096")
    p.stamp(5)
    V.release(c.mark)
    V.get(8)
    c.after_xs(p, V)
    L_ = label("CLR")
    p(f"v_cmp_gt_u32 vcc, {NZ}, v{Z+1}")
    p.raw(f"""s_cbranch_vccz {L_}_OUT
              s_movk_i32 s22, 0x2000
              {L_}:
              global_load_dword v{Z+1}, v{Z}, s[48:49] sc1
              s_waitcnt vmcnt(0)
              v_cmp_gt_u32 vcc, {NZ}, v{Z+1}
              s_sub_u32 s22, s22, 1
              s_cbranch_scc1 {L_}_OUT
              s_cbranch_vccnz {L_}
              {L_}_OUT:""")
    p(f"s_mov_b32 s23, {GB_X}")
    p.wait_tag("xs")
    p("s_barrier")
    arrive(p, "s[62:63]", varr, "s23", vone)
    p.stamp(6)
    return c

def back_setup(p, c, vx1, vx2):
    t0, t1, t2, t3 = c.t
    p(f"""s_and_b32 s33, s2, 7
          s_lshl_b32 s33, s33, 3
          s_lshr_b32 s32, s2, 5
          s_add_u32 s33, s33, s32
          s_mul_i32 s37, s33, 40960
          s_mul_i32 s32, s3, 10240
          s_add_u32 s37, s37, s32
          s_bfe_u32 s33, s2, 0x20003
          s_lshl_b32 s33, s33, 1
          s_and_b32 s32, s3, 1
          s_add_u32 s33, s33, s32
          s_mul_i32 s39, s33, 102400
          s_lshr_b32 s32, s3, 1
          s_mul_i32 s32, s32, 51200
          s_add_u32 s39, s39, s32
          s_add_u32 s39, s39, {W1P}
          v_lshrrev_b32 v{t0}, 1, v{c.vq}
          v_and_b32 v{t1}, 1, v{c.vq}
          v_lshlrev_b32 v{t1}, 4, v{t1}
          v_lshl_add_u32 v{t2}, v{c.vc}, 5, v{t1}
          v_lshl_add_u32 v{vx1}, v{t0}, 9, v{t2}
          v_lshrrev_b32 v{t2}, 3, v{c.vc}
          v_lshl_add_u32 v{t2}, v{t2}, 2, v{t0}
          v_mul_u32_u24 v{t2}, 1280, v{t2}
          v_and_b32 v{t3}, 7, v{c.vc}
          v_lshl_add_u32 v{t3}, v{t3}, 5, v{t1}
          v_add_u32 v{vx2}, v{t2}, v{t3}""")
    for row in (0, 4, 8, 1, 5, 2, 6, 9, 3, 7):
        if row >= 8:
            p(f"buffer_load_dwordx4 {vr(AX+4*row,4,'a')}, v{vx2}, s[12:15], s37 offen offset:{1024+2560*(row-8)}")
        else:
            p(f"s_add_u32 s21, s37, {1280*row}")
            p(f"buffer_load_dwordx4 {vr(AX+4*row,4,'a')}, v{vx1}, s[12:15], s21 offen")

def wload(pr, i, vl16):
    pr(f"buffer_load_dwordx4 {vr(AW+4*i,4,'a')}, v{vl16}, s[24:27], s39 offen offset:{(i%4)*1024} sc1")
    if i % 4 == 3:
        pr("s_add_u32 s39, s39, 4096")

def fft_path():
    LX, LW, LE = 0, 16384, 32768
    p = Prog()
    p("FFT_MAIN:")
    V = Alloc(1, 254)
    def gather_setup(p, V, c):
        vq, vl = c.vq, c.vl
        t0, t1, t2, t3 = c.t
        c.g = vxo, vwo, vx1, vx2, vck = [V.get() for _ in range(5)]
        code_prefetch(p, "JOIN", "KM_END", 254, 255)
        p(f"""v_and_b32 v{t0}, 3, v0
              v_xor_b32 v{t0}, v{t0}, v{vq}
              v_lshlrev_b32 v{t0}, 4, v{t0}
              v_lshrrev_b32 v{t1}, 2, v{vl}
              s_mov_b32 s28, {16*20480}
              v_mad_u32_u24 v{vxo}, v{t1}, s28, v{t0}
              v_and_b32 v{t1}, 3, v{t1}
              v_lshl_add_u32 v{t1}, v{vq}, 3, v{t1}
              s_mov_b32 s28, {4*20480}
              v_mad_u32_u24 v{vwo}, v{t1}, s28, v{t0}
              s_and_b32 s28, s2, 7
              s_mul_i32 s28, s28, 20
              s_lshr_b32 s29, s2, 3
              s_add_u32 s28, s28, s29
              s_lshl_b32 s29, s28, 6
              s_mul_i32 s30, s3, {4*20480}
              s_add_u32 s30, s30, s29
              s_mul_i32 s34, s69, {4*20480}
              s_add_u32 s34, s34, s29
              s_add_u32 s34, s34, 10240
              s_lshl_b32 s38, s3, 12
              s_mov_b32 s47, {GB_1}""")
    def early(pr, V, c):
        if pr is None:
            c.P64, c.Q64 = V.get(16, 4), V.get(16, 4)
            c.fc_, c.fs_ = V.get(8, 2), V.get(8, 2)
            c.fq8 = V.get()
            c.after_xs = lambda pp, V: gather_setup(pp, V, c)
            return
        t0, t1, t2, t3 = c.t
        fk, fb = V.get(), V.get()
        pr(f"""s_lshr_b32 s33, s3, 1
               s_and_b32 s34, s3, 1
               s_lshl_b32 s33, s33, 5
               s_lshl_b32 s34, s34, 2
               s_add_u32 s69, s33, s34
               v_lshrrev_b32 v{t0}, 2, v{c.vc}
               v_and_b32 v{t1}, 3, v{c.vc}
               v_lshl_add_u32 v{t0}, v{t0}, 3, v{t1}
               v_add_u32 v{t0}, s69, v{t0}
               v_cvt_f32_u32 v{fk}, v{t0}
               v_lshlrev_b32 v{t0}, 3, v{c.vq}
               v_cvt_f32_u32 v{c.fq8}, v{t0}
               v_mul_f32 v{fk}, {f32(1/64)}, v{fk}
               v_mul_f32 v{fb}, v{fk}, v{c.fq8}""")
        for ks in range(4):
            for i in range(4):
                n = 32 * (ks >> 1) + 4 * (ks & 1) + i
                pr(f"""v_fmamk_f32 v{t0}, v{fk}, {f32(float(n))}, v{fb}
                       v_cos_f32 v{t2}, v{t0}
                       v_sin_f32 v{t3}, v{t0}
                       v_cvt_pk_bf16_f32 v{c.P64+4*ks+i}, v{t2}, v{t3}
                       v_cvt_pk_bf16_f32 v{c.Q64+4*ks+i}, -v{t3}, v{t2}""")
        pr(f"""v_mul_f32 v{fk}, {f32(1/32)}, v{fk}
               v_mul_f32 v{fb}, {f32(1/32)}, v{fb}""")
        for mt in range(2):
            for r in range(4):
                pr(f"""v_fmamk_f32 v{t0}, v{fk}, {f32(float(2*r+mt))}, v{fb}
                       v_cos_f32 v{c.fc_+4*mt+r}, v{t0}
                       v_sin_f32 v{c.fs_+4*mt+r}, v{t0}""")
    c = phase1(p, V, False, early)
    print("p1 vgprs", V.hi, file=__import__("sys").stderr)
    vc, vq, vl, vl16 = c.vc, c.vq, c.vl, c.vl16
    t0, t1, t2, t3 = c.t
    P64, Q64, fc_, fs_, fq8 = c.P64, c.Q64, c.fc_, c.fs_, c.fq8
    vxo, vwo, vx1, vx2, vck = c.g
    P32, Q32 = V.get(16, 4), V.get(16, 4)
    ic_, is_ = V.get(8, 2), V.get(8, 2)
    fce, fb = vx1, vx2
    for a in range(2):
        if a == knob("XPOLL", 1):
            p.stamp(7)
            poll0(p, c.vrep, "s23", 16, t3)
            p("s_barrier")
            p.stamp(8)
            for it in range(4):
                p(f"s_add_u32 m0, s38, {LX + 1024*it}")
                p(f"buffer_load_dwordx4 v{vxo}, s[24:27], s30 offen sc1 lds", tag="x")
                if it < 3:
                    p("s_add_u32 s30, s30, 20480")
            for it in range(4):
                p(f"s_add_u32 m0, s38, {LW + 1024*it}")
                p(f"buffer_load_dwordx4 v{vwo}, s[24:27], s34 offen sc1 lds", tag="w")
                if it < 3:
                    p("s_add_u32 s34, s34, 20480")
            p("s_mov_b32 s35, s38")
        p(f"""v_lshl_add_u32 v{t0}, v{vc}, 1, {a}
              v_cvt_f32_u32 v{fce}, v{t0}
              v_mul_f32 v{fce}, {f32(1/32)}, v{fce}
              v_mul_f32 v{fb}, v{fce}, v{fq8}""")
        for b in range(2):
            for r in range(4):
                p(f"""v_fmamk_f32 v{t0}, v{fce}, {f32(float(2*r+b))}, v{fb}
                      v_cos_f32 v{t2}, v{t0}
                      v_sin_f32 v{t3}, v{t0}
                      v_cvt_pk_bf16_f32 v{P32+(2*a+b)*4+r}, v{t2}, v{t3}
                      v_cvt_pk_bf16_f32 v{Q32+(2*a+b)*4+r}, -v{t3}, v{t2}""")
        p(f"""v_cvt_f32_u32 v{t1}, s69
              v_add_f32 v{t1}, v{t1}, v{fq8}
              v_mul_f32 v{fce}, {f32(1/64)}, v{fce}
              v_mul_f32 v{fb}, v{fce}, v{t1}""")
        for r in range(4):
            p(f"""v_fmamk_f32 v{t0}, v{fce}, {f32(float(r))}, v{fb}
                  v_cos_f32 v{ic_+4*a+r}, v{t0}
                  v_sin_f32 v{is_+4*a+r}, v{t0}""")
    rd = V.get(4); rdw = V.get(4); vexw, voo = V.get(), V.get()
    vex = vl16
    p(f"v_lshrrev_b32 v{t0}, 2, v{vc}")
    for pc in range(4):
        p(f"""v_xor_b32 v{t1}, {pc}, v{t0}
              v_lshlrev_b32 v{t1}, 4, v{t1}
              v_lshl_add_u32 v{rd+pc}, v{vl}, 6, v{t1}
              v_add_u32 v{rdw+pc}, s35, v{rd+pc}""")
    p(f"""s_lshl_b32 s36, s3, 11
          v_add_u32 v{vexw}, s36, v{vex}
          s_mov_b32 s36, {8*40960}
          s_mul_i32 s38, s28, 1639
          s_lshr_b32 s38, s38, 16
          s_mul_i32 s38, s38, 40
          s_sub_u32 s38, s28, s38
          s_and_b32 s38, s38, 15
          v_xor_b32 v{t0}, s38, v{vc}
          v_lshlrev_b32 v{t0}, 4, v{t0}
          v_mad_u32_u24 v{voo}, v{vq}, s36, v{t0}
          s_mul_i32 s40, s69, 40960
          s_lshl_b32 s36, s28, 8
          s_add_u32 s40, s40, s36
          s_add_u32 s40, s40, {YC}
          s_add_u32 s41, s40, 40960
          s_add_u32 s42, s40, {2*40960}
          s_add_u32 s43, s40, {3*40960}""")
    p.stamp(9)
    p.wait_tag("x")
    p("s_barrier")
    p.stamp(10)
    cols = []
    OUT = P32
    for col in range(2):
        A = V.get(32, 4)
        Dr, Di = V.get(8, 4), V.get(8, 4)
        B = V.get(8, 4)
        tr, ti = A + 24, A + 28
        Wr, Wi, Wraw = A, A + 8, A + 16
        ld, s1, tw, s2, wm, i1, ti_, ex, i2, outp, wun = (Prog() for _ in range(11))
        for mt in range(2):
            for ks in range(4):
                ld(f"ds_read_b128 {vr(A+(mt*4+ks)*4,4)}, v{rd+col*2+(ks&1)} offset:{LX+(mt*2+(ks>>1))*4096}")
        for ks in range(4):
            for mt in range(2):
                a = vr(A+(mt*4+ks)*4, 4)
                s1(f"{MF} {vr(Dr+4*mt,4)}, {a}, {vr(P64+4*ks,4)}, {vr(Dr+4*mt,4) if ks else 0}")
                s1(f"{MF} {vr(Di+4*mt,4)}, {a}, {vr(Q64+4*ks,4)}, {vr(Di+4*mt,4) if ks else 0}")
        for mt in range(2):
            cmul(tw, Dr+4*mt, Di+4*mt, fc_+4*mt, fs_+4*mt, tr, ti, -1)
            for r in range(4):
                tw(f"v_cvt_pk_bf16_f32 v{B+4*mt+r}, v{tr+r}, v{ti+r}")
        for mt in range(2):
            for m2 in range(2):
                s2(f"{MF} {vr(Dr+4*m2,4)}, {vr(P32+(2*m2+mt)*4,4)}, {vr(B+4*mt,4)}, {vr(Dr+4*m2,4) if mt else 0}")
                s2(f"{MF} {vr(Di+4*m2,4)}, {vr(Q32+(2*m2+mt)*4,4)}, {vr(B+4*mt,4)}, {vr(Di+4*m2,4) if mt else 0}")
        for half in range(2):
            wun(f"ds_read_b128 {vr(Wraw+4*half,4)}, v{rdw+col*2+half} offset:{LW}")
        for m2 in range(2):
            for r in range(4):
                wm(f"v_lshlrev_b32 v{Wr+4*m2+r}, 16, v{Wraw+2*r+m2}")
                wm(f"v_and_b32 v{Wi+4*m2+r}, 0xffff0000, v{Wraw+2*r+m2}")
        for m2 in range(2):
            cmul(wm, Dr+4*m2, Di+4*m2, Wr+4*m2, Wi+4*m2, tr, ti, +1)
            for r in range(4):
                wm(f"v_cvt_pk_bf16_f32 v{B+4*m2+r}, v{ti+r}, v{tr+r}")
        for m2 in range(2):
            for nt in range(2):
                i1(f"{MF} {vr(Dr+4*nt,4)}, {vr(B+4*m2,4)}, {vr(Q32+(2*nt+m2)*4,4)}, {vr(Dr+4*nt,4) if m2 else 0}")
                i1(f"{MF} {vr(Di+4*nt,4)}, {vr(B+4*m2,4)}, {vr(P32+(2*nt+m2)*4,4)}, {vr(Di+4*nt,4) if m2 else 0}")
        for nt in range(2):
            cmul(ti_, Dr+4*nt, Di+4*nt, ic_+4*nt, is_+4*nt, tr, ti, +1)
            for r in range(4):
                ti_(f"v_cvt_pk_bf16_f32 v{B+4*nt+r}, v{ti+r}, v{tr+r}")
            ti_(f"ds_write_b128 v{vexw}, {vr(B+4*nt,4)} offset:{LE+col*8192+nt*1024}")
        for w2 in range(4):
            for nt in range(2):
                ex(f"ds_read_b128 {vr(A+(w2*2+nt)*4,4)}, v{vex} offset:{LE+col*8192+w2*2048+nt*1024}")
        for w2 in range(4):
            for nt in range(2):
                e = vr(A+(w2*2+nt)*4, 4)
                i2(f"{MF} {vr(Dr+4*nt,4)}, {vr(Q64+4*w2,4)}, {e}, {vr(Dr+4*nt,4) if w2 else 0}")
                i2(f"{MF} {vr(Di+4*nt,4)}, {vr(P64+4*w2,4)}, {e}, {vr(Di+4*nt,4) if w2 else 0}")
        for r in range(4):
            outp(f"v_cvt_pk_bf16_f32 v{OUT+4*r+col}, v{Dr+r}, v{Di+r}")
            outp(f"v_cvt_pk_bf16_f32 v{OUT+4*r+2+col}, v{Dr+4+r}, v{Di+4+r}")
        cols.append(dict(ld=ld, s1=s1, tw=tw, s2=s2, wm=wm, i1=i1, ti=ti_, ex=ex, i2=i2, out=outp, wun=wun))
    print("p2 vgprs", V.hi, file=__import__("sys").stderr)
    a, b = cols
    r1 = Prog()
    back_setup(r1, c, vx1, vx2)
    for k in ("ld", "s1", "tw", "s2"):
        r1.extend(a[k]); r1.extend(b[k])
    p.extend(schedule(r1, "p2 fwd"))
    p.stamp(11)
    p.wait_tag("w")
    p.stamp(12)
    N2 = 0
    r2 = Prog()
    for k in ("wun", "wm", "i1", "ti"):
        r2.extend(a[k]); r2.extend(b[k])
    p.extend(schedule(r2, "p2 mid"))
    p.stamp(13)
    p("s_waitcnt lgkmcnt(0)\ns_barrier")
    p.stamp(14)
    r3 = Prog()
    for k in ("ex", "i2", "out"):
        r3.extend(a[k]); r3.extend(b[k])
    for r in range(4):
        r3(f"buffer_store_dwordx4 {vr(OUT+4*r,4)}, v{voo}, s[24:27], s{40+r} offen sc1")
    p.extend(schedule(r3, "p2 inv"))
    p("s_nop 1")
    return p

def spare_path():
    p = Prog()
    p("SPARE:")
    V = Alloc(1, 254)
    LU = (32768, 57344, 83968)
    def rawloads(pr, u, kind, srd_, soff, c):
        pitch, lrow, sw = (3072, 768, 65) if kind == "B" else (1280, 640, 64)
        pr(f"s_mov_b32 exec_hi, {0xffff if kind == 'B' else 0xff}")
        for jr in range(8):
            pr(f"s_add_u32 m0, s{sw}, {LU[u] + lrow * jr}")
            pr(f"buffer_load_dwordx4 v{c.vl16}, s[{srd_}:{srd_+3}], s{soff} offen{NTR} lds", tag=f"r{u}")
            if jr < 7:
                pr(f"s_add_u32 s{soff}, s{soff}, {pitch}")
        pr("s_mov_b64 exec, -1")
    def fetch(pr, R, kind, base, c):
        for g in range(3):
            for jr in range(8):
                if kind == "B":
                    pr(f"ds_read_b32 v{R+8*g+jr}, v{c.vc3} offset:{768*jr + 64*g}")
                elif g < 2:
                    pr(f"ds_read_b32 v{R+8*g+jr}, v{c.va} offset:{base + 640*jr + 64*g}")
                else:
                    pr(f"ds_read_u16 v{R+8*g+jr}, v{c.vb} offset:{base + 640*jr}")
    def pack(pr, R, kind, dst):
        for g in range(3 if kind == "B" else 2):
            for k in range(4):
                pr(f"v_perm_b32 v{dst+8*g+k}, v{R+8*g+2*k+1}, v{R+8*g+2*k}, s36")
            for k in range(4):
                pr(f"v_perm_b32 v{dst+8*g+4+k}, v{R+8*g+2*k+1}, v{R+8*g+2*k}, s38")
        if kind == "A":
            for k in range(4):
                pr(f"v_lshl_or_b32 v{dst+16+k}, v{R+16+2*k+1}, 16, v{R+16+2*k}")
    def stores(pr, nf, src, soff, tag, vl16):
        for f in range(nf):
            if f == 4:
                pr(f"s_add_u32 s{soff}, s{soff}, 4096")
            pr(f"buffer_store_dwordx4 {vr(src+4*f,4)}, v{vl16}, s[24:27], s{soff} offen offset:{(f%4)*1024} sc1", tag=tag)
    def after_xs(pp, V, c):
        c.regs = (V.get(), V.get(), [V.get(24) for _ in range(2)], [V.get(24, 4) for _ in range(3)], [V.get(24, 4) for _ in range(2)])
    def early(pr, V, c):
        if pr is None:
            c.va, c.vb, c.vc3, c.vcs, c.vl128 = (V.get() for _ in range(5))
            c.ONE = V.get(4, 4)
            c.after_xs = lambda pp, V: after_xs(pp, V, c)
            return
        pr(f"""s_mul_i32 s64, s3, 5184
               s_mul_i32 s65, s3, 6208
               s_mul_i32 s31, s3, {8*1280}
               s_sub_u32 s11, s2, 160
               s_and_b32 s28, s11, 1
               s_lshr_b32 s29, s11, 1
               s_mul_i32 s66, s29, {32*1280}
               s_mul_i32 s32, s28, 640
               s_add_u32 s32, s32, s31
               s_add_u32 s66, s66, s32
               s_lshl_b32 s30, s28, 2
               s_add_u32 s30, s30, s3
               s_mul_i32 s67, s30, 48
               s_add_u32 s67, s67, s29
               s_mul_i32 s67, s67, 5120
               s_add_u32 s67, s67, {W4P}
               s_cmp_ge_u32 s11, 80
               s_cselect_b32 s33, 16, 0
               s_cselect_b32 s68, 0, 0xffff
               s_sub_u32 s11, s11, s33
               s_cmp_ge_u32 s11, 40
               s_cselect_b32 s16, s54, s52
               s_cselect_b32 s17, s55, s53
               s_cselect_b32 s20, {W2P - W1P}, 0
               s_cselect_b32 s33, 40, 0
               s_cselect_b32 s10, 0, 0xffff
               s_mov_b32 s18, {640*640*2}
               s_sub_u32 s33, s11, s33
               s_lshr_b32 s29, s33, 1
               s_mul_i32 s21, s29, {32*1280}
               s_add_u32 s21, s21, s32""")
        pr(f"""s_mul_i32 s46, s30, 20
               s_add_u32 s46, s46, s29
               s_mul_i32 s46, s46, 5120
               s_add_u32 s46, s46, s20
               s_add_u32 s46, s46, {W1P}
               s_mul_i32 s47, s30, 320
               s_add_u32 s47, s47, {CS}
               s_mov_b32 s4, s56
               s_mov_b32 s5, s57
               s_mov_b32 s6, {640*1536*2}
               s_mov_b32 s7, 0x20000
               s_and_b32 s28, s11, 3
               s_lshr_b32 s29, s11, 2
               s_lshl_b32 s32, s29, 2
               s_add_u32 s32, s32, s3
               s_mul_i32 s20, s32, {8*3072}
               s_mul_i32 s33, s28, 768
               s_add_u32 s20, s20, s33
               s_lshl_b32 s32, s28, 2
               s_add_u32 s32, s32, s3
               s_mul_i32 s8, s32, 20
               s_add_u32 s8, s8, s29
               s_mul_i32 s8, s8, 6144
               s_add_u32 s8, s8, {W3P}
               s_mul_i32 s9, s32, 384
               s_add_u32 s9, s9, {CS + 40*64}
               s_and_b32 s30, s3, 1
               s_lshr_b32 s31, s3, 1
               s_mul_i32 s31, s31, 320
               v_mul_u32_u24 v{c.vb}, 5184, v{c.vq}
               v_add_u32 v{c.vb}, s31, v{c.vb}
               v_lshl_add_u32 v{c.va}, v{c.vc}, 2, v{c.vb}
               v_lshl_add_u32 v{c.vb}, v{c.vc}, 1, v{c.vb}
               s_lshl_b32 s34, s30, 5
               s_add_u32 s34, s34, 128
               v_add_u32 v{c.vb}, s34, v{c.vb}
               s_mul_i32 s34, s30, 192
               v_add_u32 v{c.va}, s34, v{c.va}
               s_mul_i32 s34, s3, 192
               s_add_u32 s34, s34, {LU[1]}
               v_mul_u32_u24 v{c.vc3}, 6208, v{c.vq}
               v_lshl_add_u32 v{c.vc3}, v{c.vc}, 2, v{c.vc3}
               v_add_u32 v{c.vc3}, s34, v{c.vc3}
               v_mov_b32 v{c.ONE}, 0x3f803f80
               v_mov_b32 v{c.ONE+1}, 0x3f803f80
               v_mov_b32 v{c.ONE+2}, 0x3f803f80
               v_mov_b32 v{c.ONE+3}, 0x3f803f80
               v_lshlrev_b32 v{c.vcs}, 2, v{c.vc}
               v_lshlrev_b32 v{c.vl128}, 7, v{c.vl}""")
    c = phase1(p, V, True, early)
    vl16, vl128, ONE = c.vl16, c.vl128, c.ONE
    t0, t1, t2, t3 = c.t
    vx1, vx2, R, Fr, CSr = c.regs
    def csum(pr, nf, src, cs, smask, soff, tag):
        for f in range(nf):
            pr(f"{MF} {vr(cs+4*f,4)}, {vr(ONE,4)}, {vr(src+4*f,4)}, 0")
        pr(f"s_mov_b32 exec_lo, s{smask}\ns_mov_b32 exec_hi, 0")
        for f in range(nf):
            pr(f"buffer_atomic_add_f32 v{cs+4*f}, v{c.vcs}, s[24:27], s{soff} offen offset:{64*f} sc1", tag=tag)
        pr("s_mov_b64 exec, -1")
    rawloads(p, 0, "A", 16, 21, c)
    rawloads(p, 1, "B", 4, 20, c)
    p(f"""s_mov_b32 s16, s58
          s_mov_b32 s17, s59
          s_mov_b32 s18, {1536*640*2}
          s_mov_b32 s44, {GB_1}
          s_mov_b32 s38, s37""")
    rawloads(p, 2, "A", 16, 66, c)
    p.wait_tag("r0")
    p("s_barrier")
    p.stamp(7)
    fetch(p, R[0], "A", LU[0], c)
    pack(p, R[0], "A", Fr[2])
    stores(p, 5, Fr[2], 46, "u1", vl16)
    p(f"v_add_u32 v{c.va}, {LU[2]}, v{c.va}\nv_add_u32 v{c.vb}, {LU[2]}, v{c.vb}")
    p.stamp(8)
    p.wait_tag("u1")
    p("s_barrier")
    arrive(p, "s[62:63]", c.varr, "s44", c.vone)
    p.stamp(9)
    fetch(p, R[1], "B", 0, c)
    fetch(p, R[0], "A", 0, c)
    pack(p, R[1], "B", Fr[1])
    stores(p, 6, Fr[1], 8, "u3", vl16)
    pack(p, R[0], "A", Fr[0])
    stores(p, 5, Fr[0], 67, "u3", vl16)
    p.stamp(10)
    csum(p, 5, Fr[2], CSr[0], 10, 47, "u3")
    csum(p, 6, Fr[1], CSr[1], 68, 9, "u3")
    p.stamp(11)
    back_setup(p, c, vx1, vx2)
    p.stamp(12)
    p.stamp(13)
    p.stamp(14)
    p("s_branch JOIN\nCODE_END:")
    return p
```

```python
from common import *
from front import arrive, poll0, acheck_issue, check_done, wload, NWF, AW, AX

import os
EXP = os.environ.get('EXP', '').split(',')
SLOT = 20480
SC = "" if "plain" in EXP else "sc1"
SL_ = "" if "pload" in EXP else ("sc0" if "sc0load" in EXP else "sc1")
SLOT_ORDER = (4, 5, 6, 7, 2, 3, 0, 1)
def slot_of(c):
    return SLOT_ORDER[c % 8] * SLOT

def km():
    LY, LA, LR, LS = 0, 2 * SLOT, 0, SLOT
    p = Prog()
    V = Alloc(1, 256)
    p("JOIN:")
    p.stamp(15)
    p("s_load_dwordx2 s[6:7], s[0:1], 64")
    vc, vq, vl16, t0, t1, t2, t3, vo2, vone, vsh, vck, vl128, vhr = (V.get() for _ in range(13))
    junk_n = [0]
    def junk():
        junk_n[0] += 1
        return f'a{240 + junk_n[0] % 16}'
    vb = [vl16, V.get(), V.get()]
    RESID = V.get(20, 4)
    base_mark = V.mark()
    vl, varr, vrep = (V.get() for _ in range(3))
    p(f"""v_and_b32 v{vc}, 15, v0
          v_bfe_u32 v{vq}, v0, 4, 2
          v_and_b32 v{vl}, 63, v0
          v_lshlrev_b32 v{vl16}, 4, v{vl}
          s_and_b32 s9, s2, 7
          s_lshr_b32 s8, s2, 3
          s_lshl_b32 s28, s9, 3
          s_lshr_b32 s29, s8, 2
          s_add_u32 s28, s28, s29
          s_and_b32 s29, s8, 3
          s_and_b32 s30, s3, 1
          s_lshr_b32 s31, s3, 1
          s_xor_b32 s32, s30, s31
          s_mul_i32 s34, s3, 10240
          s_mul_i32 s35, s28, 40960
          s_add_u32 s36, s35, s34
          s_add_u32 s36, s36, {YC}
          v_lshrrev_b32 v{t0}, 1, v{vq}
          v_lshl_add_u32 v{t0}, v{t0}, 4, v{vc}
          v_lshlrev_b32 v{vo2}, 4, v{t0}
          v_add_u32 v{vb[1]}, 0x10000, v{vl16}
          v_add_u32 v{vb[2]}, 0x20000, v{vl16}
          v_mov_b32 v{vone}, 1
          v_lshlrev_b32 v{vl128}, 7, v{vl}
          s_and_b32 s33, s2, 15
          s_lshl_b32 s33, s33, 7
          v_lshl_add_u32 v{varr}, v{vc}, 11, s33
          v_lshlrev_b32 v{vsh}, 7, v{vc}
          s_lshr_b32 s33, s2, 4
          s_lshl_b32 s33, s33, 11
          v_add_u32 v{vsh}, s33, v{vsh}
          s_mov_b32 s23, {GB_Y}
          s_mov_b32 s69, {GB_3}
          s_mov_b32 s21, {GB_1}
          s_cmp_lt_u32 s2, 160
          s_cselect_b32 s20, s23, s69
          s_lshl_b32 s38, s29, 1
          s_add_u32 s38, s38, s30
          s_mul_i32 s19, s3, 5120
          s_and_b32 s33, s8, 7
          s_mul_i32 s16, s33, 102400
          s_add_u32 s16, s16, s19
          s_add_u32 s16, s16, {W2P}
          s_mul_i32 s18, s33, 245760
          s_add_u32 s18, s18, s19
          s_add_u32 s18, s18, {W4P}
          s_and_b32 s33, s8, 15
          s_mul_i32 s17, s33, 122880
          s_add_u32 s17, s17, s19
          s_add_u32 s17, s17, {W3P}""")
    acheck_issue(p, vck, vsh, "s21")
    def wchunk(pr, c):
        if "nochunk" in EXP:
            return
        sreg = 16 if c < 5 else (17 if c < 11 else 18)
        pr(f"s_add_u32 m0, s19, {slot_of(c)}")
        for i in range(4):
            pr(f"buffer_load_dwordx4 v{vl16}, s[24:27], s{sreg} offen offset:{i*1024} sc1 lds", tag=f"w{c}")
        pr(f"s_add_u32 m0, s19, {slot_of(c)+4096}\ns_add_u32 s20, s{sreg}, 4096")
        pr(f"buffer_load_dwordx4 v{vl16}, s[24:27], s20 offen sc1 lds", tag=f"w{c}")
        pr(f"s_add_u32 s{sreg}, s{sreg}, {SLOT}")
    SAr, SAi = V.get(4, 4), V.get(4, 4)
    T0c, T0s, T1c, T1s = (V.get(4) for _ in range(4))
    B0 = [V.get(4, 4), V.get(4, 4)]
    B02l, B02h = V.get(4, 4), V.get(4, 4)
    B1l = [V.get(4, 4), V.get(4, 4)]; B1h = [V.get(4, 4), V.get(4, 4)]
    B12 = V.get(4, 4)
    Il, Ih = V.get(4, 4), V.get(4, 4)
    ry = RESID
    wa = V.get(8); wa2 = V.get(4)
    ra = [V.get(8), V.get(8)]
    mk = V.mark()
    fc, fq4, fq1, sg, a0, ad, k1_, k2_ = (V.get() for _ in range(8))
    u = [V.get() for _ in range(8)]
    KAP = 1.0 / (640 * 2048)
    p(f"""s_mov_b32 s50, -1
          s_mov_b32 s51, 0
          s_mov_b32 s52, 0x00ff00ff
          s_mov_b32 s53, 0x00ff00ff
          s_mov_b32 s54, 0x0000ffff
          s_mov_b32 s55, 0x0000ffff
          s_mov_b32 s56, 0xffff0000
          s_mov_b32 s57, 0xffff0000
          s_mov_b32 s58, 0x00ff00ff
          s_mov_b32 s59, 0xff00ff00
          v_cvt_f32_u32 v{fc}, v{vc}
          v_lshlrev_b32 v{t0}, 2, v{vq}
          v_cvt_f32_u32 v{fq4}, v{t0}
          v_and_b32 v{t0}, 4, v{t0}
          v_add_u32 v{t0}, 16, v{t0}
          v_cvt_f32_u32 v{fq1}, v{t0}
          v_cndmask_b32 v{sg}, -1.0, 1.0, s[50:51]
          v_mov_b32 v{t0}, {f32(3.0)}
          v_cndmask_b32 v{t0}, v{t0}, 0, s[50:51]
          v_add_f32 v{t0}, v{t0}, v{fq4}
          v_mul_f32 v{ad}, {f32(1/16)}, v{fc}
          v_mul_f32 v{a0}, v{t0}, v{ad}
          v_mul_f32 v{ad}, v{ad}, v{sg}""")
    c1 = Prog()
    for i in range(4):
        x0, x1, x2, x3 = u[4*(i&1):4*(i&1)+4]
        c1(f"""v_fmamk_f32 v{x0}, v{ad}, {f32(float(i))}, v{a0}
               v_cos_f32 v{x1}, v{x0}
               v_sin_f32 v{x2}, v{x0}
               v_mul_f32 v{x3}, v{sg}, v{x1}
               v_mul_f32 v{x0}, v{sg}, v{x2}
               v_cvt_pk_bf16_f32 v{SAr+i}, v{x1}, -v{x0}
               v_cvt_pk_bf16_f32 v{SAi+i}, v{x2}, v{x3}""")
    c1(f"""v_mov_b32 v{k2_}, {f32(2*KAP)}
           v_mov_b32 v{t0}, {f32(KAP)}
           v_cndmask_b32 v{k1_}, v{k2_}, v{t0}, s[56:57]
           v_cndmask_b32 v{sg}, v{k2_}, 0, s[56:57]
           v_mul_f32 v{ad}, {f32(1/640)}, v{fc}""")
    for (cc, ss, fq, first, rest) in ((T0c, T0s, fq4, k2_, k2_), (T1c, T1s, fq1, k1_, sg)):
        c1(f"v_mul_f32 v{a0}, v{ad}, v{fq}")
        for r in range(4):
            sc = first if r == 0 else rest
            x0 = u[r]
            c1(f"""v_fmamk_f32 v{x0}, v{ad}, {f32(float(r))}, v{a0}
                   v_cos_f32 v{cc+r}, v{x0}
                   v_sin_f32 v{ss+r}, v{x0}
                   v_mul_f32 v{cc+r}, v{sc}, v{cc+r}
                   v_mul_f32 v{ss+r}, v{sc}, v{ss+r}""")
    p.extend(schedule(c1))
    p.stamp(16)
    p("s_waitcnt vmcnt(0)")
    check_done(p, vck, vsh, "s21", 6)
    p("s_barrier")
    arrive(p, "s[62:63]", varr, "s20", vone)
    p.stamp(17)
    c2 = Prog()
    for i in range(NWF):
        wload(c2, i, vl16)
    k = 0
    for T in range(3):
        if T < 2:
            c2(f"v_add_f32 v{ad}, {f32(16.0*T)}, v{fc}")
        else:
            c2(f"""v_and_b32 v{t0}, 7, v{vc}
                   v_add_u32 v{t0}, 32, v{t0}
                   v_cvt_f32_u32 v{ad}, v{t0}""")
        c2(f"v_mul_f32 v{ad}, {f32(1/40)}, v{ad}")
        for t, fq in ((0, fq4), (1, fq1)):
            c2(f"v_mul_f32 v{a0}, v{ad}, v{fq}")
            for r in range(4):
                x0, x1, x2, x3 = u[4*(k&1):4*(k&1)+4]; k += 1
                c2(f"""v_fmamk_f32 v{x0}, v{ad}, {f32(float(r))}, v{a0}
                       v_cos_f32 v{x1}, v{x0}
                       v_sin_f32 v{x2}, v{x0}""")
                if T < 2 and t == 0:
                    c2(f"v_cvt_pk_bf16_f32 v{B0[T]+r}, v{x1}, -v{x2}")
                else:
                    c2(f"v_cvt_pk_bf16_f32 v{x3}, v{x1}, -v{x2}")
                    if T < 2:
                        c2(f"v_cndmask_b32 v{B1l[T]+r}, 0, v{x3}, s[50:51]\nv_cndmask_b32 v{B1h[T]+r}, v{x3}, 0, s[50:51]")
                    elif t == 0:
                        c2(f"v_cndmask_b32 v{B02l+r}, 0, v{x3}, s[52:53]\nv_cndmask_b32 v{B02h+r}, v{x3}, 0, s[52:53]")
                    else:
                        c2(f"v_cndmask_b32 v{B12+r}, 0, v{x3}, s[58:59]")
    c2(f"""v_and_b32 v{t0}, 1, v{vc}
           v_lshlrev_b32 v{t0}, 4, v{t0}
           v_mov_b32 v{t1}, 0x3f80
           v_lshlrev_b32 v{t1}, v{t0}, v{t1}
           v_lshrrev_b32 v{t0}, 1, v{vc}
           v_lshlrev_b32 v{t2}, 2, v{vq}
           v_sub_u32 v{t0}, v{t0}, v{t2}""")
    for k in range(4):
        c2(f"""v_cmp_eq_u32 vcc, {k}, v{t0}
               v_cndmask_b32 v{Il+k}, 0, v{t1}, vcc
               v_cmp_eq_u32 vcc, {k-8}, v{t0}
               v_cndmask_b32 v{Ih+k}, 0, v{t1}, vcc""")
    def yaddr(dst, n, k1reg, chunk_text, zero):
        c2(f"""v_subrev_u32 v{t0}, 1, v{k1reg}
               v_sub_u32 v{t1}, 39, v{k1reg}
               v_cndmask_b32 v{t0}, v{t1}, v{t0}, s[50:51]
               v_sub_u32 v{t1}, 3, v{vq}
               v_cndmask_b32 v{t1}, v{t1}, v{vq}, s[50:51]
               v_mul_u32_u24 v{t1}, 80, v{t1}
               v_add_u32 v{t1}, v{t1}, v{t0}
               v_and_b32 v{t0}, 15, v{t0}
               v_xor_b32 v{t0}, {chunk_text}, v{t0}
               v_lshlrev_b32 v{t0}, 4, v{t0}
               v_lshl_add_u32 v{dst}, v{t1}, 8, v{t0}""")
        if zero:
            c2(f"""s_mov_b32 s60, 0x00010001
                   s_mov_b32 s61, 0
                   v_mov_b32 v{t0}, 0x40000
                   v_cndmask_b32 v{dst}, v{dst}, v{t0}, s[60:61]""")
        for r in range(1, n):
            c2(f"v_xor_b32 v{dst+r}, {8*r}, v{dst}")
    c2("s_lshl_b32 s33, s3, 2")
    yaddr(ry, 8, vc, "s33", True)
    c2(f"""v_and_b32 v{t2}, 7, v{vc}
           v_add_u32 v{t2}, 16, v{t2}
           v_lshrrev_b32 v{t3}, 3, v{vc}
           v_lshl_add_u32 v{t3}, v{t3}, 1, s33""")
    yaddr(ry + 8, 4, t2, f"v{t3}", False)
    c2(f"""s_mul_i32 s33, s31, 20480
           s_add_u32 s33, s33, {LA}
           s_lshl_b32 s40, s30, 3
           v_lshrrev_b32 v{t0}, 1, v{vq}
           v_and_b32 v{t1}, 1, v{vq}
           v_lshlrev_b32 v{t1}, 3, v{t1}
           v_lshl_add_u32 v{t0}, v{t0}, 8, v{t1}
           v_add_u32 v{t0}, s33, v{t0}
           v_xor_b32 v{t1}, s40, v{vc}
           v_lshl_add_u32 v{t1}, v{t1}, 4, v{t0}
           v_lshl_add_u32 v{wa}, v{vc}, 9, v{t1}
           v_and_b32 v{t2}, 7, v{vc}
           v_lshrrev_b32 v{t1}, 3, v{vc}
           v_lshlrev_b32 v{t1}, 2, v{t1}
           v_xor_b32 v{t1}, v{t1}, v{t2}
           v_xor_b32 v{t1}, s40, v{t1}
           v_lshl_add_u32 v{t1}, v{t1}, 4, v{t0}
           v_lshl_add_u32 v{wa2}, v{t2}, 9, v{t1}""")
    for r in range(1, 8):
        c2(f"v_xor_b32 v{wa+r}, {16*r}, v{wa}")
    for r in range(1, 4):
        c2(f"v_xor_b32 v{wa2+r}, {16*r}, v{wa2}")
    p.extend(schedule(c2, "p3 cst"))
    p.stamp(18)
    poll0(p, vsh, "s23", 10, t3)
    p("s_barrier")
    p.stamp(19)
    for n in range(10):
        if n % 4 == 0:
            p(f"s_add_u32 m0, s34, {LY + 1024*n}")
        p(f"buffer_load_dwordx4 v{vl16}, s[24:27], s36 offen offset:{(n%4)*1024} sc1 lds", tag="y")
        if n % 4 == 3:
            p("s_add_u32 s36, s36, 4096")
    acheck_issue(p, vck, vsh, "s69")
    NW0 = min(50, NWF + 4)
    for i in range(NWF, NW0):
        wload(p, i, vl16)
    p.wait_tag("y")
    check_done(p, vck, vsh, "s69", 6)
    p("s_barrier")
    p.stamp(20)
    q = Prog()
    V.release(mk)
    Aop = [V.get(12, 4) for _ in range(2)]
    DA = V.get(24, 4)
    E = [V.get(12, 4) for _ in range(2)]
    DB = V.get(20, 4)
    TR = [(V.get(4), V.get(4)) for _ in range(2)]
    for i in range(NW0, 50):
        wload(q, i, vl16)
    wchunk(q, 0); wchunk(q, 1)
    q(f"""v_lshrrev_b32 v{t0}, 1, v{vq}
          v_xor_b32 v{t0}, v{t0}, v{vc}
          v_lshlrev_b32 v{t0}, 4, v{t0}
          v_lshl_add_u32 v{t0}, v{vq}, 8, v{t0}
          s_mul_i32 s41, s31, 10240
          s_add_u32 s41, s41, {LA}
          s_mul_i32 s42, s32, 20480
          s_add_u32 s43, s41, 20480
          s_sub_u32 s43, s43, s42
          s_add_u32 s42, s42, s41
          s_lshl_b32 s44, s31, 6""")
    for n in range(8):
        q(f"""s_add_u32 s33, s44, {32*n}
              s_and_b32 s33, s33, 0xf0
              v_xor_b32 v{t1}, s33, v{t0}
              v_add_u32 v{ra[0]+n}, s42, v{t1}
              v_add_u32 v{ra[1]+n}, s43, v{t1}""")
    kk = 0
    for rho in range(4):
        A_, da, e, db = Aop[rho & 1], DA, E[rho & 1], DB
        for s_ in range(3):
            q(f"ds_read2st64_b64 {vr(A_+4*s_,4)}, v{ry+rho+4*s_} offset0:0 offset1:20", tag="y")
        for s_ in range(3):
            q(f"{MF} {vr(da+8*s_,4)}, {vr(A_+4*s_,4)}, {vr(SAr,4)}, 0")
            q(f"{MF} {vr(da+8*s_+4,4)}, {vr(A_+4*s_,4)}, {vr(SAi,4)}, 0")
        for s_ in range(3):
            cc, ss = (T0c, T0s) if s_ < 2 else (T1c, T1s)
            tr, ti = TR[kk & 1]; kk += 1
            cmul(q, da+8*s_, da+8*s_+4, cc, ss, tr, ti, +1)
            for r in range(4):
                q(f"v_cvt_pk_bf16_f32 v{e+4*s_+r}, v{tr+r}, v{ti+r}")
        for ch in range(2):
            row = rho + 4 * ch
            for T in range(2):
                d_ = vr(db + 8*ch + 4*T, 4)
                q(f"{MF} {d_}, {vr(Ih if T else Il,4)}, {vr(AX+4*row,4,'a')}, 0")
                q(f"{MF} {d_}, {vr(e+4*ch,4)}, {vr(B0[T],4)}, {d_}")
                q(f"{MF} {d_}, {vr(e+8,4)}, {vr(B1h[T] if ch else B1l[T],4)}, {d_}")
        d_ = vr(db + 16, 4)
        q(f"{MF} {d_}, {vr(Ih if rho & 1 else Il,4)}, {vr(AX+32+4*(rho>>1),4,'a')}, 0")
        q(f"{MF} {d_}, {vr(e,4)}, {vr(B02l,4)}, {d_}")
        q(f"{MF} {d_}, {vr(e+4,4)}, {vr(B02h,4)}, {d_}")
        q(f"{MF} {d_}, {vr(e+8,4)}, {vr(B12,4)}, {d_}")
        for k in range(5):
            d0 = db + 4 * k
            q(f"v_cvt_pk_bf16_f32 v{d0}, v{d0}, v{d0+1}")
            q(f"v_cvt_pk_bf16_f32 v{d0+1}, v{d0+2}, v{d0+3}")
            if k < 4:
                q(f"ds_write_b64 v{wa+rho+4*(k>>1)}, {vr(d0,2)} offset:{8192*(k&1)}", tag="a")
            else:
                q(f"ds_write_b64 v{wa2+rho}, {vr(d0,2)} offset:16384", tag="a")
    p.extend(schedule(q, "p3 ifft"))
    p("s_waitcnt lgkmcnt(0)\ns_barrier")
    p.stamp(21)
    V.release(mk)
    g = Prog()
    ACC = V.get(40, 4)
    SS, SG, ONE = V.get(4, 4), V.get(4, 4), V.get(4, 4)
    BF = V.get(48, 4); NBF = 12
    vho, vrw, vrr, vsw, vsr = (V.get() for _ in range(5))
    CSV = B0[0]
    g(f"""v_mov_b32 v{ONE}, 0x3f803f80
          v_mov_b32 v{ONE+1}, 0x3f803f80
          v_mov_b32 v{ONE+2}, 0x3f803f80
          v_mov_b32 v{ONE+3}, 0x3f803f80
          s_cmp_eq_u32 s3, s29
          s_cselect_b32 s33, 0, 0x80000000
          v_add_u32 v{vho}, s33, v{vl16}
          v_add_u32 v{vhr}, s33, v{vl128}
          s_lshl_b32 s45, s28, 1
          s_add_u32 s45, s45, s32
          s_mul_i32 s46, s45, 20480
          s_mul_i32 s33, s31, 10240
          s_add_u32 s47, s46, s33
          s_add_u32 s47, s47, {HB}
          s_mov_b32 s56, s47
          s_add_u32 s57, s47, 8192
          s_mul_i32 s21, s38, 320
          s_add_u32 s21, s21, {CS}
          v_lshlrev_b32 v{t0}, 4, v{vq}""")
    for f in range(5):
        g(f"buffer_load_dwordx4 {vr(CSV+4*f,4)}, v{t0}, s[24:27], s21 offen offset:{64*f} sc1")
    wchunk(g, 2); wchunk(g, 3)
    for n in range(10):
        for lt in range(2):
            b_ = BF + 4 * ((2*n + lt) % NBF)
            g(f"ds_read_b128 {vr(b_,4)}, v{ra[lt]+(n%8)} offset:{1024*n}")
        for lt in range(2):
            b_ = vr(BF + 4 * ((2*n + lt) % NBF), 4)
            for f in range(5):
                acc = vr(ACC + 8*f + 4*lt, 4)
                g(f"{MF} {acc}, {vr(AW+4*(5*n+f),4,'a')}, {b_}, {acc if n else 0}")
            if lt == 0:
                g(f"{MF} {vr(SS,4)}, {vr(ONE,4)}, {b_}, {vr(SS,4) if n else 0}")
                g(f"{MF} {vr(SG,4)}, {b_}, {b_}, {vr(SG,4) if n else 0}")
                g(f"buffer_store_dwordx4 {b_}, v{vho}, s[24:27], s47 offen offset:{(n%4)*1024} sc1")
                if n % 4 == 3:
                    g("s_add_u32 s47, s47, 4096")
    g(f"""v_add_u32 v{vrw}, s19, v{vl16}
          s_xor_b32 s33, s3, 2
          s_mul_i32 s33, s33, 5120
          v_add_u32 v{vrr}, s33, v{vl16}
          s_lshl_b32 s33, s3, 7
          v_lshl_add_u32 v{vsw}, v{vc}, 3, s33
          v_xor_b32 v{vsr}, 0x180, v{vsw}
          s_mov_b32 s60, 0xaaaaaaaa
          s_mov_b32 s61, 0xaaaaaaaa
          s_mov_b32 s62, 0xcccccccc
          s_mov_b32 s63, 0xcccccccc
          s_mov_b32 s64, 0x00f0000f
          s_mov_b32 s65, 0xf0000f00""")
    for f in range(5):
        g(f"ds_write_b128 v{vrw}, {vr(ACC+8*f+4,4)} offset:{LR+1024*f}", tag="r")
    g(f"""v_cndmask_b32 v{SG}, v{SG}, v{SG+1}, s[60:61]
          v_cndmask_b32 v{SG+2}, v{SG+2}, v{SG+3}, s[60:61]
          v_cndmask_b32 v{SS+1}, v{SG}, v{SG+2}, s[62:63]""")
    p.extend(schedule(g, "p3 gemm"))
    if "preread" in EXP:
        p(f"""s_lshl_b32 s90, s9, 4
              s_lshr_b32 s91, s8, 3
              s_lshl_b32 s91, s91, 2
              s_add_u32 s91, s91, s90
              s_add_u32 s91, s91, s3
              s_and_b32 s92, s8, 7
              s_mul_i32 s93, s91, 20480
              s_mul_i32 s94, s92, 2560
              s_add_u32 s93, s93, s94
              s_add_u32 s93, s93, {X1B}
              s_lshl_b32 s94, s92, 14
              s_lshl_b32 s95, s91, 7
              s_add_u32 s94, s94, s95
              s_add_u32 s94, s94, {ST3}
              s_lshr_b32 s91, s8, 4
              s_lshl_b32 s91, s91, 3
              s_add_u32 s91, s91, s90
              s_lshl_b32 s92, s3, 1
              s_add_u32 s91, s91, s92
              s_mul_i32 s91, s91, 49152
              s_and_b32 s92, s8, 15
              s_mul_i32 s92, s92, 3072
              s_add_u32 s91, s91, s92
              s_add_u32 s91, s91, {UB}
              s_add_u32 s92, s91, 49152
              s_mov_b64 exec, 0xfffff
              buffer_load_dword {junk()}, v{vl128}, s[24:27], s93 offen
              s_mov_b64 exec, 1
              buffer_load_dword {junk()}, v{vl128}, s[24:27], s94 offen
              s_mov_b64 exec, 0xffffff
              buffer_load_dword {junk()}, v{vl128}, s[24:27], s91 offen
              buffer_load_dword {junk()}, v{vl128}, s[24:27], s92 offen
              s_mov_b64 exec, -1""")
    p(f"""s_mov_b64 exec, s[64:65]
          ds_write_b64 v{vsw}, {vr(SS,2)} offset:{LS}
          s_mov_b64 exec, -1
          s_waitcnt lgkmcnt(0)
          s_barrier""")
    p.stamp(22)
    e = Prog()
    e(f"ds_read_b64 {vr(SS,2)}, v{vsw} offset:{LS}")
    e(f"ds_read_b64 {vr(SS+2,2)}, v{vsr} offset:{LS}")
    for f in range(5):
        e(f"ds_read_b128 {vr(ACC+8*f+4,4)}, v{vrr} offset:{LR+1024*f}")
    wchunk(e, 4); wchunk(e, 5)
    vk0 = V.get(2, 2); rr = V.get(2, 2); mr = V.get(2, 2); st = V.get(2, 2)
    e(f"""v_mov_b32 v{vk0}, {f32(GK0)}
          v_mov_b32 v{vk0+1}, {f32(GK0)}
          s_mov_b32 s66, {f32(GK1)}
          s_mov_b32 s67, {f32(GK1)}
          v_pk_add_f32 {vr(SS,2)}, {vr(SS,2)}, {vr(SS+2,2)}
          v_mul_f32 v{st}, {f32(1/640)}, v{SS}
          v_mul_f32 v{t0}, {f32(1/640)}, v{SS+1}
          v_fma_f32 v{t0}, -v{st}, v{st}, v{t0}
          v_max_f32 v{t0}, 0, v{t0}
          v_add_f32 v{t1}, {f32(1e-5)}, v{t0}
          v_rsq_f32 v{st+1}, v{t1}
          v_mul_f32 v{t0}, v{t0}, v{st+1}
          v_fmaak_f32 v{t0}, v{t0}, v{st+1}, {f32(1e-5)}
          v_rsq_f32 v{t0}, v{t0}
          v_mul_f32 v{rr}, v{t0}, v{st+1}
          v_mul_f32 v{mr}, v{rr}, v{st}
          s_mul_i32 s33, s29, 5120
          s_add_u32 s46, s46, s33
          s_add_u32 s46, s46, {GB}
          s_mul_i32 s33, s30, 3072
          s_add_u32 s48, s46, s33
          s_lshl_b32 s33, s30, 9
          s_add_u32 s49, s46, s33
          s_lshl_b32 s45, s45, 7
          s_add_u32 s44, s45, {ST1}
          s_add_u32 s45, s45, {FL}
          s_mul_i32 s33, s30, 2560
          s_add_u32 s43, s46, s33
          v_lshlrev_b32 v{t3}, 3, v{vc}""")
    GT = [BF + 4 * k for k in range(5)]
    O = BF + 32
    for f in range(5):
        x = ACC + 8 * f
        for h in (0, 2):
            e(f"v_pk_add_f32 {vr(x+h,2)}, {vr(x+h,2)}, {vr(x+4+h,2)}")
            e(f"v_pk_mul_f32 {vr(CSV+4*f+h,2)}, {vr(CSV+4*f+h,2)}, {vr(mr,2)} op_sel_hi:[1,0]")
            e(f"v_pk_fma_f32 {vr(x+h,2)}, {vr(x+h,2)}, {vr(rr,2)}, {vr(CSV+4*f+h,2)} op_sel_hi:[1,0,1] neg_lo:[0,0,1] neg_hi:[0,0,1]")
        gelu4(e, x, GT[f], vk0, 66)
        if f & 1:
            pr_ = f >> 1
            for r in range(4):
                e(f"v_cvt_pk_bf16_f32 v{O+4*pr_+r}, v{ACC+16*pr_+r}, v{ACC+16*pr_+8+r}")
            e(f"buffer_store_dwordx4 {vr(O+4*pr_,4)}, v{vl16}, s[24:27], s48 offen offset:{1024*pr_} sc1")
    def odd_pack(pr, x, o):
        pr(f"""v_cvt_pk_bf16_f32 v{o}, v{x}, v{x+1}
               v_cvt_pk_bf16_f32 v{o+2}, v{x}, v{x+1}
               v_cvt_pk_bf16_f32 v{o+1}, v{x+2}, v{x+3}
               v_cvt_pk_bf16_f32 v{o+3}, v{x+2}, v{x+3}""")
    def odd_swap(pr, o):
        pr(f"v_permlane16_swap_b32 v{o}, v{o+2}\nv_permlane16_swap_b32 v{o+1}, v{o+3}")
    odd_pack(e, ACC + 32, O + 8); odd_swap(e, O + 8)
    p.extend(schedule(e, "p3 epi"))
    p(f"""s_mov_b64 exec, s[54:55]
          buffer_store_dwordx4 {vr(O+8,4)}, v{vo2}, s[24:27], s49 offen offset:2048 sc1
          s_mov_b64 exec, 0xffff""")
    p(f"buffer_store_dwordx2 {vr(st,2)}, v{t3}, s[24:27], s44 offen sc1", tag="st")
    p("s_mov_b64 exec, -1")
    p.stamp(23)

    def signal(mask, voff, sreg, rb, sc="sc1"):
        p.wait_tag("st")
        p(f"""s_mov_b64 exec, {mask}
              buffer_atomic_add v{vone}, v{voff}, s[24:27], s{sreg} offen {sc}""")
        for m, va_, sr in (rb if (sc and ("rb" in EXP or (len(rb) == 3 and "norb1" not in EXP))) else []):
            p(f"""s_mov_b64 exec, {m}
                  buffer_load_dword {junk()}, v{va_}, s[24:27], s{sr} offen sc1""")
        p("s_mov_b64 exec, -1")
    def poll(name, mask, vaddr, sreg, target, sc="sc1"):
        p(f"""s_mov_b64 exec, {mask}
              s_movk_i32 s22, 0x2000
              {name}:
              v_mov_b32 v{t3}, 0
              buffer_atomic_add v{t3}, v{vaddr}, s[24:27], s{sreg} offen sc0 {sc}
              s_waitcnt vmcnt(0)
              v_cmp_gt_u32 vcc, {target}, v{t3}
              s_sub_u32 s22, s22, 1
              s_cbranch_scc1 {name}_OUT
              s_cbranch_vccnz {name}
              {name}_OUT:
              s_mov_b64 exec, -1""")
    WR_N, LAG = 16, 12
    def wread(pr, WR, c0, n):
        off = slot_of(c0 + n // 20) + (n % 20) * 1024
        pr(f"ds_read_b128 {vr(WR+4*(n%WR_N),4)}, v{vb[off>>16]} offset:{off & 65535}")

    V.release(base_mark)
    va = V.get(4); vh2, vz, vpl = V.get(), V.get(), V.get()
    ACC = V.get(48, 4)
    WR = V.get(4 * WR_N, 4)
    RES = V.get(24, 4)
    O = V.get(24, 4)
    st = V.get(2, 2); rr = V.get(4, 2); mr = V.get(4, 2); vk0 = V.get(2, 2)
    SL = V.get(8); GT = [V.get(4, 2) for _ in range(3)]; CT = V.get(4, 2)
    s4 = Prog()
    s4(f"""s_lshl_b32 s28, s9, 4
           s_lshr_b32 s33, s8, 3
           s_lshl_b32 s33, s33, 2
           s_add_u32 s28, s28, s33
           s_add_u32 s28, s28, s3
           s_and_b32 s29, s8, 7
           s_lshr_b32 s30, s29, 1
           s_and_b32 s31, s29, 1
           s_mul_i32 s40, s28, 20480
           s_mul_i32 s33, s30, 5120
           s_add_u32 s40, s40, s33
           s_mul_i32 s33, s31, 3072
           s_add_u32 s41, s40, s33
           s_lshl_b32 s33, s31, 9
           s_add_u32 s42, s40, s33
           s_add_u32 s42, s42, 2048
           v_and_b32 v{t1}, 1, v{vq}
           v_lshl_add_u32 v{vh2}, v{t1}, 3, v{vo2}
           v_mov_b32 v{vz}, 0
           s_lshl_b32 s33, s28, 4
           v_add_u32 v{t0}, s33, v{vc}
           v_mov_b32 v{SL}, 0x80000000""")
    for g_, sh in enumerate((1, -1, 2, -2)):
        s4(f"""v_subrev_u32 v{t1}, {sh}, v{t0}
               v_lshrrev_b32 v{t2}, 4, v{t1}
               v_mul_u32_u24 v{t2}, 20480, v{t2}
               v_lshl_add_u32 v{t2}, v{vq}, 8, v{t2}
               v_cmp_gt_u32 vcc, 2048, v{t1}
               v_and_b32 v{t1}, 15, v{t1}
               v_lshl_add_u32 v{t2}, v{t1}, 4, v{t2}
               v_cndmask_b32 v{va+g_}, v{SL}, v{t2}, vcc""")
    s4(f"""v_add3_u32 v{t0}, v{vc}, s28, -1
           v_max_i32 v{t0}, 0, v{t0}
           v_min_u32 v{t0}, 127, v{t0}
           v_lshlrev_b32 v{vpl}, 7, v{t0}
           s_mov_b32 s23, {FL}""")
    p.extend(schedule(s4))
    p.wait_tag("st")
    p.stampb(14)
    signal(1, vz, 45, [("0xfffff", vl128, 43), (-1, vhr, 56), ("0xffff", vhr, 57)])
    p.wait_tag("w4")
    p("s_barrier")
    poll("KM_P4", 7, vpl, 23, 8)
    p.stamp(24)
    g = Prog()
    g(f"""s_add_u32 s32, s41, {HB}
          s_add_u32 s33, s42, {HB}
          s_lshl_b32 s34, s28, 7
          s_add_u32 s35, s34, {ST1}
          v_lshlrev_b32 v{t0}, 3, v{vc}
          buffer_load_dwordx2 {vr(st,2)}, v{t0}, s[24:27], s35 offen sc1
          buffer_load_dwordx4 {vr(RES,4)}, v{vl16}, s[24:27], s32 offen sc1
          buffer_load_dwordx4 {vr(RES+4,4)}, v{vl16}, s[24:27], s32 offen offset:1024 sc1
          buffer_load_dwordx2 {vr(RES+8,2)}, v{vh2}, s[24:27], s33 offen sc1
          s_mov_b32 s36, {GB}""")
    for ks in range(20):
        g(f"buffer_load_dwordx4 {vr(4*ks,4,'a')}, v{va+ks//5}, s[24:27], s36 offen offset:{(ks%4)*1024} sc1")
        if ks % 4 == 3:
            g("s_add_u32 s36, s36, 4096")
    wchunk(g, 6); wchunk(g, 7)
    def unpack(pr, src, dst):
        for pr_ in range(2):
            for r in range(4):
                pr(f"v_lshlrev_b32 v{dst+8*pr_+r}, 16, v{src+4*pr_+r}")
                pr(f"v_and_b32 v{dst+8*pr_+4+r}, 0xffff0000, v{src+4*pr_+r}")
        for h in range(2):
            pr(f"v_lshlrev_b32 v{dst+16+2*h}, 16, v{src+8+h}")
            pr(f"v_and_b32 v{dst+16+2*h+1}, 0xffff0000, v{src+8+h}")
    unpack(g, RES, RESID)
    g(f"v_mul_f32 v{mr}, v{st}, v{st+1}\nv_mov_b32 v{rr}, v{st+1}")
    for k in range(10):
        g(f"v_pk_fma_f32 {vr(ACC+2*k,2)}, {vr(RESID+2*k,2)}, {vr(rr,2)}, {vr(mr,2)} op_sel_hi:[1,0,0] neg_lo:[0,0,1] neg_hi:[0,0,1]")
    for n in range(100):
        wread(g, WR, 0, n)
        ks, f = divmod(n, 5)
        g(f"{MF} {vr(ACC+4*f,4)}, {vr(WR+4*(n%WR_N),4)}, {vr(4*ks,4,'a')}, {vr(ACC+4*f,4)}")
    g(f"""s_add_u32 s32, s41, {X1B}
          s_add_u32 s33, s42, {X1B}
          s_mov_b32 s38, 0x3f803f80
          v_mov_b32 v{t0}, 0
          v_mov_b32 v{t1}, 0""")
    for pr_ in range(2):
        for r_ in range(4):
            g(f"v_cvt_pk_bf16_f32 v{O+4*pr_+r_}, v{ACC+8*pr_+r_}, v{ACC+8*pr_+4+r_}")
        g(f"buffer_store_dwordx4 {vr(O+4*pr_,4)}, v{vl16}, s[24:27], s32 offen offset:{1024*pr_} {SC}")
    odd_pack(g, ACC + 16, O + 8)
    g(f"v_mov_b32 v{O+12}, v{O+8}\nv_mov_b32 v{O+13}, v{O+9}")
    odd_swap(g, O + 8)
    for k in (0, 1, 2, 3, 4, 5, 6, 7, 12, 13):
        g(f"v_dot2c_f32_bf16 v{t0}, s38, v{O+k}\nv_dot2c_f32_bf16 v{t1}, v{O+k}, v{O+k}")
    g(f"""v_permlane16_swap_b32 v{t0}, v{t1}
          v_add_f32 v{t0}, v{t0}, v{t1}
          v_mov_b32 v{t1}, v{t0}
          v_permlane32_swap_b32 v{t0}, v{t1}
          v_add_f32 v{t0}, v{t0}, v{t1}
          v_lshrrev_b32 v{t2}, 2, v{vl16}
          s_lshl_b32 s35, s29, 14
          s_add_u32 s35, s35, s34
          s_add_u32 s35, s35, {ST3}
          s_add_u32 s45, s34, {FL + 16384}
          s_mul_i32 s43, s31, 2560
          s_add_u32 s43, s43, s40
          s_add_u32 s43, s43, {X1B}""")
    p.extend(schedule(g, "p4"))
    p(f"""s_mov_b64 exec, s[54:55]
          buffer_store_dwordx4 {vr(O+8,4)}, v{vo2}, s[24:27], s33 offen {SC}
          s_mov_b64 exec, s[50:51]""")
    p(f"buffer_store_dword v{t0}, v{t2}, s[24:27], s35 offen {SC}", tag="st")
    p("s_mov_b64 exec, -1\ns_barrier")
    p.stamp(25)
    s5 = Prog()
    wchunk(s5, 8); wchunk(s5, 9); wchunk(s5, 10)
    s5(f"v_mov_b32 v{O+8}, v{O+12}\nv_mov_b32 v{O+9}, v{O+13}")
    unpack(s5, O, WR)
    for k in range(10):
        s5(f"v_pk_add_f32 {vr(RESID+2*k,2)}, {vr(RESID+2*k,2)}, {vr(WR+2*k,2)}")
    s5(f"""s_lshl_b32 s46, s9, 4
           s_lshr_b32 s33, s8, 4
           s_lshl_b32 s33, s33, 3
           s_add_u32 s46, s46, s33
           s_lshl_b32 s33, s3, 1
           s_add_u32 s46, s46, s33
           s_and_b32 s47, s8, 15
           s_lshl_b32 s48, s46, 7
           s_add_u32 s23, s48, {FL + 16384}
           s_mul_i32 s36, s46, 20480
           s_add_u32 s36, s36, {X1B}
           s_add_u32 s37, s36, 20480
           s_mul_i32 s32, s47, 384
           s_add_u32 s32, s32, {CS + 40*64}
           v_lshlrev_b32 v{t0}, 4, v{vq}""")
    CSV = RES
    for f in range(6):
        s5(f"buffer_load_dwordx4 {vr(CSV+4*f,4)}, v{t0}, s[24:27], s32 offen offset:{64*f} sc1")
    p.extend(schedule(s5))
    p.wait_tag("st")
    p.stampb(13)
    signal(1, vz, 45, [("0xfffff", vl128, 43)], SC)
    poll("KM_P5", 3, vl128, 23, 8, SC)
    p("s_barrier")
    p.stamp(26)
    g = Prog()
    acc = lambda f, lt: ACC + 4 * (2 * f + lt)
    for ks in range(20):
        for lt in range(2):
            g(f"buffer_load_dwordx4 {vr(4*(2*ks+lt),4,'a')}, v{vl16}, s[24:27], s{36+lt} offen offset:{(ks%4)*1024} {SL_}")
        if ks % 4 == 3:
            g("s_add_u32 s36, s36, 4096\ns_add_u32 s37, s37, 4096")
    g(f"""v_lshrrev_b32 v{t0}, 1, v{vq}
          v_lshlrev_b32 v{t0}, 16, v{t0}
          v_and_b32 v{t1}, 1, v{vq}
          v_lshl_add_u32 v{t0}, v{t1}, 6, v{t0}
          v_lshl_add_u32 v{t0}, v{vc}, 2, v{t0}
          s_add_u32 s32, s48, {ST3}""")
    for jj in range(4):
        for lt in range(2):
            g(f"buffer_load_dword v{SL+4*lt+jj}, v{t0}, s[24:27], s32 offen offset:{128*lt} {SL_}")
        if jj < 3:
            g("s_add_u32 s32, s32, 16384")
    wchunk(g, 11); wchunk(g, 12)
    for n in range(120):
        wread(g, WR, 5, n)
        ks, f = divmod(n, 6)
        for lt in range(2):
            a_ = vr(acc(f, lt), 4)
            g(f"{MF} {a_}, {vr(WR+4*(n%WR_N),4)}, {vr(4*(2*ks+lt),4,'a')}, {a_ if ks else 0}")
    for lt in range(2):
        a = SL + 4 * lt
        g(f"v_add_f32 v{a}, v{a}, v{a+1}\nv_add_f32 v{a+2}, v{a+2}, v{a+3}\nv_add_f32 v{a}, v{a}, v{a+2}")
    g(f"""v_permlane32_swap_b32 v{SL}, v{SL+4}
          v_add_f32 v{SL}, v{SL}, v{SL+4}
          v_mov_b32 v{SL+1}, v{SL}
          v_permlane16_swap_b32 v{SL}, v{SL+1}
          v_mul_f32 v{SL}, {f32(1/640)}, v{SL}
          v_mul_f32 v{SL+1}, {f32(1/640)}, v{SL+1}
          v_fma_f32 v{SL+1}, -v{SL}, v{SL}, v{SL+1}
          v_max_f32 v{SL+1}, 0, v{SL+1}
          v_add_f32 v{SL+1}, {f32(1e-5)}, v{SL+1}
          v_rsq_f32 v{rr}, v{SL+1}
          v_mul_f32 v{mr}, v{rr}, v{SL}
          v_mov_b32 v{rr+2}, v{rr}
          v_mov_b32 v{mr+2}, v{mr}
          v_permlane32_swap_b32 v{rr}, v{rr+2}
          v_permlane32_swap_b32 v{mr}, v{mr+2}
          v_mov_b32 v{vk0}, {f32(GK0)}
          v_mov_b32 v{vk0+1}, {f32(GK0)}
          s_mul_i32 s40, s46, {48*1024}
          s_mul_i32 s32, s47, 3072
          s_add_u32 s40, s40, s32
          s_add_u32 s43, s40, {UB}
          s_add_u32 s44, s43, {48*1024}""")
    p.extend(schedule(g, "p5"))
    p.stampb(11)
    p("s_barrier")
    pass
    e = Prog()
    k = 0
    for pr_ in range(3):
        wchunk(e, 13 + pr_)
        for lt in range(2):
            for f in (2*pr_, 2*pr_+1):
                x = acc(f, lt)
                for h in (0, 2):
                    e(f"v_pk_mul_f32 {vr(CT+h,2)}, {vr(CSV+4*f+h,2)}, {vr(mr+2*lt,2)} op_sel_hi:[1,0]")
                    e(f"v_pk_fma_f32 {vr(x+h,2)}, {vr(x+h,2)}, {vr(rr+2*lt,2)}, {vr(CT+h,2)} op_sel_hi:[1,0,1] neg_lo:[0,0,1] neg_hi:[0,0,1]")
                gelu4(e, x, GT[k % 3], vk0, 66); k += 1
            o = O + 12 * lt + 4 * pr_
            for r_ in range(4):
                e(f"v_cvt_pk_bf16_f32 v{o+r_}, v{acc(2*pr_,lt)+r_}, v{acc(2*pr_+1,lt)+r_}")
            e(f"buffer_store_dwordx4 {vr(o,4)}, v{vl16}, s[24:27], s{43+lt} offen offset:{1024*pr_} {SC}", tag="st")
    p.extend(schedule(e, "p5 epi"))
    p.stamp(27)
    s6 = Prog()
    wchunk(s6, 16); wchunk(s6, 17)
    s6(f"""s_add_u32 s45, s48, {FL + 32768}
           s_add_u32 s23, s34, {FL + 32768}
           s_mul_i32 s36, s28, {48*1024}
           s_add_u32 s36, s36, {UB}""")
    srd(s6, 12, 6, S * D * 2)
    p.extend(schedule(s6))
    p.wait_tag("st")
    p.stampb(12)
    signal(3, vl128, 45, [("0xffffff", vl128, 43), ("0xffffff", vl128, 44)], SC)
    wchunk(p, 18)
    poll("KM_P6", 1, vz, 23, 16, SC)
    p("s_barrier")
    p.stamp(28)
    def aload(pr, ks):
        pr(f"buffer_load_dwordx4 {vr(4*ks,4,'a')}, v{vl16}, s[24:27], s36 offen offset:{(ks%4)*1024} {SL_}")
        if ks % 4 == 3:
            pr("s_add_u32 s36, s36, 4096")
    def mf6(pr, n):
        ks, f = divmod(n, 5)
        pr(f"{MF} {vr(RESID+4*f,4)}, {vr(WR+4*(n%WR_N),4)}, {vr(4*ks,4,'a')}, {vr(RESID+4*f,4)}")
    plan = [(0, 60, range(0, 22), ()), (60, 100, range(22, 30), (19, 20)), (100, 160, range(30, 42), (21, 22)), (160, 240, range(42, 48), ())]
    for ri, (n0, n1, kss, chunks) in enumerate(plan):
        g = Prog()
        for ks in kss:
            aload(g, ks)
        for c in chunks:
            wchunk(g, c)
        for n in range(n0, n1):
            if n >= LAG:
                mf6(g, n - LAG)
            wread(g, WR, 11, n)
        if ri < 3:
            p.extend(schedule(g, f"p6 r{ri}"))
            p.stampb(1 + 3 * ri)
            if ri == 2:
                p.wait_tag("w22")
            p.stampb(2 + 3 * ri)
            p("s_barrier")
            p.stampb(3 + 3 * ri)
    for n in range(240 - LAG, 240):
        mf6(g, n)
    g(f"""v_mul_u32_u24 v{t0}, 1280, v{vc}
          v_lshl_add_u32 v{t1}, v{vq}, 4, v{t0}
          v_lshl_add_u32 v{t2}, v{vq}, 3, v{t0}
          s_mul_i32 s40, s28, {16*1280}
          s_mul_i32 s32, s30, 320
          s_add_u32 s40, s40, s32
          s_mul_i32 s32, s31, 192
          s_add_u32 s41, s40, s32
          s_lshl_b32 s32, s31, 5
          s_add_u32 s42, s40, s32""")
    for pr_ in range(2):
        for r_ in range(4):
            g(f"v_cvt_pk_bf16_f32 v{O+4*pr_+r_}, v{RESID+8*pr_+r_}, v{RESID+8*pr_+4+r_}")
        g(f"buffer_store_dwordx4 {vr(O+4*pr_,4)}, v{t1}, s[12:15], s41 offen offset:{64*pr_}")
    odd_pack(g, RESID + 16, O + 8); odd_swap(g, O + 8)
    p.extend(schedule(g, "p6 r3"))
    p.stampb(10)
    p(f"""s_mov_b64 exec, s[54:55]
          buffer_store_dwordx4 {vr(O+8,4)}, v{t2}, s[12:15], s42 offen offset:128""")
    pass
    p.stamps_out(29)
    p("KM_END:\ns_endpgm")
    return p
```

```python
S, D, F = 2048, 640, 1536
XW   = 0
YC   = XW + 256 * 20480
HB   = YC + 2621440
GB   = HB + 2621440
X1B  = GB + 2621440
UB   = X1B + 2621440
W1P  = UB + 6291456
W2P  = W1P + 819200
W3P  = W2P + 819200
W4P  = W3P + 1966080
CS   = W4P + 1966080
FL   = CS + 8704
GB_X = FL + 3 * 16384
GB_Y = GB_X + 32768
GB_1 = GB_Y + 32768
GB_3 = GB_1 + 32768
NZ = 48
ZEND = CS + NZ * 4096
assert GB_3 + 32768 <= ZEND
ST1  = ZEND
ST3  = ST1 + 2048 * 8
PROF = ST3 + 8 * 2048 * 8
WS_END = PROF + 65536
assert all(x % 128 == 0 for x in (YC, HB, GB, X1B, UB, W1P, W2P, W3P, W4P, CS, FL, ST1, ST3))
```

```python
import sys
from build import *
from front import head, fft_path, spare_path
from km import km
ks = [("net_kernel", [head(), fft_path(), km(), spare_path()], 256, 256, 256, 256, 163840)]
build(ks, sys.argv[1] if len(sys.argv) > 1 else "cur.s")
```

```python
import re

import os
PROFILE = bool(os.environ.get("PROFILE"))
TRANS = ("v_exp_f32", "v_log_f32", "v_rcp_f32", "v_rsq_f32", "v_sqrt_f32", "v_sin_f32", "v_cos_f32")

def _regs(tok):
    tok = tok.strip()
    if tok.startswith("-"):
        tok = tok[1:]
    m = re.fullmatch(r"abs\((.*)\)", tok)
    if m:
        tok = m.group(1)
    m = re.fullmatch(r"\|(.*)\|", tok)
    if m:
        tok = m.group(1)
    m = re.fullmatch(r"([vsa])(\d+)", tok)
    if m:
        return [(m.group(1), int(m.group(2)))]
    m = re.fullmatch(r"([vsa])\[(\d+):(\d+)\]", tok)
    if m:
        return [(m.group(1), i) for i in range(int(m.group(2)), int(m.group(3)) + 1)]
    if tok == "vcc":
        return [("vcc", 0)]
    if tok == "exec":
        return [("exec", 0)]
    if tok == "m0":
        return [("m0", 0)]
    return []

class Ins:
    __slots__ = ("text", "op", "w", "r", "cls", "passes", "srcc", "srcab", "dpp", "wide", "lds_dma", "tag")
    def __init__(self, text, tag=None):
        self.text = text
        self.tag = tag
        body = text.split(";")[0].strip()
        parts = body.split(None, 1)
        op = parts[0]
        self.op = op
        rest = parts[1] if len(parts) > 1 else ""
        toks = []
        depth = 0
        cur = ""
        for ch in rest:
            if ch in "[(":
                depth += 1
            if ch in "])":
                depth -= 1
            if ch == "," and depth == 0:
                toks.append(cur.strip()); cur = ""
            else:
                cur += ch
        if cur.strip():
            toks.append(cur.strip())
        mods = ""
        if toks:
            last = toks[-1].split(None, 1)
            toks[-1] = last[0]
            if len(last) > 1:
                mods = last[1]
        R = [_regs(t) for t in toks]
        self.w, self.r = [], []
        self.passes = 0
        self.srcc, self.srcab = [], []
        self.dpp = ("row_" in mods) or ("quad_perm" in mods) or ("wave_" in mods) or op.endswith("_dpp")
        self.wide = False
        self.lds_dma = False
        flat = lambda L: [x for l in L for x in l]
        if op.startswith("v_mfma"):
            self.cls = "mfma"
            self.passes = 8 if "32x32" in op else 4
            self.w = R[0]; self.r = flat(R[1:]); self.srcc = R[3]; self.srcab = R[1] + R[2]
        elif op.startswith("v_"):
            self.cls = "trans" if op.replace("_e32", "").replace("_e64", "") in TRANS else ("dot" if op.startswith("v_dot") else "valu")
            self.w = list(R[0]); self.r = flat(R[1:])
            if op.startswith(("v_fmac", "v_pk_fmac", "v_dot2c", "v_writelane")):
                self.r += R[0]
            if op.startswith(("v_permlane16_swap", "v_permlane32_swap", "v_swap")):
                self.w = R[0] + R[1]; self.r = R[0] + R[1]
            if op.startswith(("v_add_co", "v_sub_co", "v_addc_co", "v_subb_co")):
                self.w = R[0] + R[1]; self.r = flat(R[2:])
            if self.dpp:
                self.r += R[0]
            if op.startswith("v_cndmask") and len(toks) == 3:
                self.r += [("vcc", 0)]
        elif op.startswith(("buffer_load", "global_load")):
            self.cls = "vmem"
            if " lds" in (" " + mods) or "_lds_" in op:
                self.lds_dma = True
                self.r = flat(R) + [("m0", 0)]
            else:
                self.w = R[0]; self.r = flat(R[1:])
        elif op.startswith(("buffer_store", "global_store", "buffer_atomic", "global_atomic")):
            self.cls = "vmem"
            self.r = flat(R)
            self.wide = op.endswith(("x3", "x4"))
            if "atomic" in op and "sc0" in mods:
                self.w = R[0]
        elif op.startswith(("buffer_inv", "buffer_wbl2")):
            self.cls = "vmem"
        elif op.startswith("ds_"):
            self.cls = "ds"
            if op.startswith(("ds_read", "ds_bpermute", "ds_permute", "ds_swizzle")):
                self.w = R[0]; self.r = flat(R[1:])
            else:
                self.r = flat(R)
        elif op.startswith(("s_load", "s_memtime", "s_memrealtime", "s_buffer_load")):
            self.cls = "smem"
            self.w = R[0]; self.r = flat(R[1:])
        elif op in ("s_waitcnt", "s_nop", "s_barrier", "s_endpgm", "s_sleep", "s_setprio", "s_branch") or op.startswith("s_cbranch"):
            self.cls = "ctl"
        elif op.startswith("s_cmp") or op.startswith("s_bitcmp"):
            self.cls = "salu"
            self.r = flat(R)
        elif op.startswith("s_"):
            self.cls = "salu"
            self.w = list(R[0]); self.r = flat(R[1:])
            if "saveexec" in op:
                self.w += [("exec", 0)]
            if op.startswith(("s_addk", "s_mulk")):
                self.r += R[0]
        elif op.endswith(":"):
            self.cls = "label"
        else:
            raise ValueError("unknown instruction: " + text)

def is_valu(i):
    return i.cls in ("valu", "trans", "dot")

class Prog:
    def __init__(self):
        self.items = []
    def __call__(self, text, tag=None):
        for line in text.strip().split("\n"):
            line = line.strip()
            if line:
                self.items.append(Ins(line, tag))
        return self
    def wait_tag(self, tag):
        self.items.append(("wait_tag", tag))
    def wait_lds(self):
        self.items.append(Ins("s_waitcnt lgkmcnt(0)"))
    def extend(self, other):
        self.items.extend(other.items)
    def stampb(self, i):
        if os.environ.get("PSET") == "back":
            self.stamp(i, True)
    def stamp(self, i, force=False):
        if os.environ.get("PSET") == "back" and 0 < i < 15 and not force:
            return
        if PROFILE:
            assert i < 30
            self.items.append(("fence",))
            self.items.append(Ins("s_memrealtime s[100:101]"))
            self.items.append(Ins("s_waitcnt lgkmcnt(0)"))
            self.items.append(Ins(f"s_mov_b32 s{70+i}, s100"))
            self.items.append(("fence",))
    def stamps_out(self, n, srd=24):
        if not PROFILE:
            return
        from layout import PROF
        self("s_waitcnt vmcnt(0)")
        self.stamp(n)
        self("s_memrealtime s[100:101]\ns_waitcnt lgkmcnt(0)")
        n += 1
        Prog._lab = getattr(Prog, "_lab", 0) + 1
        lab = f"PROF_SKIP{Prog._lab}"
        self(f"s_mov_b64 exec, -1\nv_mov_b32 v1, 0\nv_cmp_eq_u32 vcc, 0, v0\ns_and_saveexec_b64 s[66:67], vcc\ns_cbranch_execz {lab}")
        self(f"s_lshl_b32 s68, s2, 7\ns_add_u32 s68, s68, {PROF}")
        for i in range(n + 1):
            self(f"v_mov_b32 v2, s{70+i}\nbuffer_store_dword v2, v1, s[{srd}:{srd+3}], s68 offen offset:{4*i}")
        if os.environ.get("PDBG"):
            self(f"s_cmp_lg_u32 s2, 8\ns_cbranch_scc1 {lab}\ns_load_dwordx2 s[66:67], s[0:1], 72\ns_waitcnt lgkmcnt(0)")
            for k, i in enumerate(int(x) for x in os.environ["PDBG"].split(",")):
                self(f"s_sub_u32 s68, s{70+i}, s70\nv_mov_b32 v2, s68\nglobal_store_dword v1, v2, s[66:67] offset:{4+4*k}")
        self(f"{lab}:")
    def raw(self, text):
        self.items.append(("raw", text))
    def comment(self, c):
        self.items.append(("comment", c))

def interleave(*progs, weights=None):
    out = Prog()
    n = [len(p.items) for p in progs]
    pos = [0] * len(progs)
    total = sum(n)
    for _ in range(total):
        best, bk = None, None
        for k in range(len(progs)):
            if pos[k] < n[k]:
                frac = (pos[k] + 0.5) / n[k]
                if best is None or frac < best:
                    best, bk = frac, k
        out.items.append(progs[bk].items[pos[bk]])
        pos[bk] += 1
    return out

def _need(prev, cur):
    n = 0
    pw, cw, cr = set(prev.w), set(cur.w), set(cur.r)
    vec = lambda s: {x for x in s if x[0] in "va"}
    sc = lambda s: {x for x in s if x[0] in ("s", "vcc")}
    if prev.cls == "mfma":
        big = 8 if prev.passes == 4 else 12
        if cur.cls == "mfma":
            if pw & set(cur.srcab):
                n = max(n, big)
            if pw & set(cur.srcc):
                if not (prev.w == cur.srcc and prev.passes == cur.passes):
                    n = max(n, big - 2)
            elif pw & cw:
                n = max(n, big)
        elif is_valu(cur) or cur.cls in ("vmem", "ds"):
            if pw & (cr | cw):
                n = max(n, big)
            if is_valu(cur) and set(prev.srcc) & cw:
                n = max(n, 3 if prev.passes == 4 else 7)
            if cur.cls in ("vmem", "ds") and set(prev.srcc) & cw:
                n = max(n, 3 if prev.passes == 4 else 7)
    if is_valu(prev):
        if cur.cls == "mfma" and vec(pw) & cr:
            n = max(n, 3 if prev.cls == "dot" else 2)
        if prev.cls == "trans" and is_valu(cur) and cur.cls != "trans" and pw & cr:
            n = max(n, 1)
        if prev.cls == "dot" and (pw & (cr | cw)):
            if not (cur.op == prev.op and not (pw & set(cur.r[:2]))):
                n = max(n, 3)
        if is_valu(cur) and cur.dpp and vec(pw) & cr:
            n = max(n, 2)
        if cur.op.startswith("v_permlane") and vec(pw) & cr:
            n = max(n, 2)
        if cur.op.startswith(("v_readlane", "v_readfirstlane")) and vec(pw) & cr:
            n = max(n, 1)
        if sc(pw):
            if is_valu(cur) and sc(pw) & cr:
                n = max(n, 4 if cur.op.startswith(("v_readlane", "v_writelane")) else 2)
            if cur.cls == "vmem" and sc(pw) & cr:
                n = max(n, 5)
            if cur.cls in ("salu", "smem") and sc(pw) & cr:
                n = max(n, 1)
        if ("sdwa" in prev.text or "op_sel:" in prev.text and "pk_" not in prev.op) and is_valu(cur) and pw & (cr | cw):
            n = max(n, 1)
    if prev.cls == "vmem" and prev.wide and vec(set(prev.r)) & cw:
        n = max(n, 2)
    if prev.cls == "ds" and prev.op.endswith(("b128", "b96")) and not prev.w and vec(set(prev.r)) & cw:
        n = max(n, 2)
    if prev.cls == "salu" and ("m0", 0) in pw and cur.lds_dma:
        n = max(n, 1)
    return n

LG_SLACK = 3
def finalize(prog, stats=None):
    out = []
    lines = []
    vm = []
    lg = []
    def emit(i):
        out.append(i); lines.append("  " + i.text if i.cls != "label" else i.text)
    def states(i):
        if i.op == "s_nop":
            return int(i.text.split()[1], 0) + 1
        return 0 if i.cls == "label" else 1
    def wait(vn=None, ln=None):
        t = "s_waitcnt"
        if vn is not None:
            t += f" vmcnt({min(vn, 63)})"
            del vm[:len(vm) - min(vn, 63) if min(vn, 63) < len(vm) else 0]
        if ln is not None:
            t += f" lgkmcnt({min(ln, 15)})"
            del lg[:len(lg) - min(ln, 15) if min(ln, 15) < len(lg) else 0]
        emit(Ins(t))
    for it in prog.items:
        if isinstance(it, tuple):
            if it[0] == "comment":
                lines.append("  ; " + it[1])
            elif it[0] == "raw":
                emit(Ins("s_nop 4"))
                for ln in it[1].strip().split("\n"):
                    ln = ln.strip()
                    lines.append(ln if ln.endswith(":") else "  " + ln)
                emit(Ins("s_nop 4"))
            elif it[0] == "wait_tag":
                idx = max((k for k, e in enumerate(vm) if e[1] == it[1]), default=-1)
                if idx >= 0:
                    wait(vn=len(vm) - 1 - idx)
            continue
        i = it
        if i.op == "s_waitcnt":
            m = re.search(r"vmcnt\((\d+)\)", i.text)
            if m:
                k = int(m.group(1)); del vm[:max(0, len(vm) - k)]
            m = re.search(r"lgkmcnt\((\d+)\)", i.text)
            if m:
                k = int(m.group(1)); del lg[:max(0, len(lg) - k)]
            emit(i); continue
        touched = set(i.r) | set(i.w)
        vn = ln = None
        idx = max((k for k, e in enumerate(vm) if e[0] & touched), default=-1)
        if idx >= 0:
            vn = len(vm) - 1 - idx
        idx = max((k for k, e in enumerate(lg) if e[0] & touched), default=-1)
        if idx >= 0:
            ln = 0 if any(e[1] for e in lg) else len(lg) - 1 - idx
            if ln >= 8:
                ln -= LG_SLACK
        if i.cls == "vmem" and len(vm) >= 63:
            vn = min(vn if vn is not None else 62, 62)
        if vn is not None or ln is not None:
            wait(vn, ln)
        if i.cls not in ("label", "ctl"):
            need, dist = 0, 0
            for p in reversed(out[-24:]):
                if p.cls not in ("ctl", "label"):
                    need = max(need, _need(p, i) - dist)
                dist += states(p)
                if dist >= 14:
                    break
            while need > 0:
                k = min(need, 16)
                emit(Ins(f"s_nop {k-1}"))
                if stats is not None:
                    stats["nops"] = stats.get("nops", 0) + k
                need -= k
        emit(i)
        if i.cls == "vmem":
            vm.append((set(i.w), i.tag))
        elif i.cls == "ds":
            lg.append((set(i.w), False))
        elif i.cls == "smem":
            lg.append((set(i.w), True))
    if stats is not None:
        for i in out:
            stats[i.cls] = stats.get(i.cls, 0) + 1
    return "\n".join(lines) + "\n"

def kernel_text(name, prog, vgprs, agprs=0, sgprs=96, show=True):
    st = {}
    body = finalize(prog, st)
    if show:
        print(name, st)
    acc = (vgprs + 3) // 4 * 4
    nfv = acc + agprs if agprs else vgprs
    code = f""".text
.globl {name}
.p2align 8
.type {name},@function
{name}:
{body}  s_endpgm
"""
    desc = f""".p2align 6
.amdhsa_kernel {name}
  .amdhsa_next_free_vgpr {nfv}
  .amdhsa_next_free_sgpr {sgprs}
  .amdhsa_accum_offset {acc}
  .amdhsa_group_segment_fixed_size 0
  .amdhsa_kernarg_size 88
  .amdhsa_user_sgpr_count 2
  .amdhsa_user_sgpr_kernarg_segment_ptr 1
  .amdhsa_system_sgpr_workgroup_id_x 1
.end_amdhsa_kernel
"""
    return code, desc

class Alloc:
    def __init__(self, start, limit, kind="v"):
        self.n, self.limit, self.kind = start, limit, kind
        self.hi = start
    def get(self, count=1, align=1):
        self.n = (self.n + align - 1) // align * align
        r = self.n
        self.n += count
        self.hi = max(self.hi, self.n)
        assert self.n <= self.limit, f"out of {self.kind} registers"
        return r
    def mark(self):
        return self.n
    def release(self, m):
        self.n = m

def vr(b, n, k="v"):
    return f"{k}{b}" if n == 1 else f"{k}[{b}:{b+n-1}]"

_NO_SCC_W = ("s_mov", "s_mul_i32", "s_cselect", "s_movk", "s_mulk", "s_getreg", "s_mul_hi", "s_getpc", "s_setprio")
def _rw(i):
    r, w = set(i.r), set(i.w)
    if i.cls == "salu":
        if not i.op.startswith(_NO_SCC_W):
            w.add(("scc", 0))
        if i.op.startswith(("s_cselect", "s_addc", "s_subb")):
            r.add(("scc", 0))
    if i.cls in ("valu", "trans", "dot", "mfma", "vmem", "ds"):
        r.add(("exec", 0))
    if i.cls == "vmem":
        w.add(("vmq", 0))
    if i.cls == "smem":
        w.add(("smq", 0))
    if i.cls == "ds":
        region = i.tag or "lds"
        if i.w:
            r.add(("ldsmem", region))
        else:
            w.add(("ldsmem", region))
    return r, w

def _issue(i):
    if i.cls == "mfma": return 8
    if i.cls == "trans": return 8
    if i.cls in ("valu", "dot"): return 4.2
    return 4

def _lat(p, c, kind):
    if kind != "raw":
        return max(_issue(p), 4 * (_need(p, c) + 1))
    if p.cls == "mfma":
        if c.cls == "mfma" and p.w == c.srcc and not (set(p.w) & set(c.srcab)):
            return 4 * p.passes
        return 4 * p.passes + 24
    if p.cls == "ds": return 130
    if p.cls == "vmem": return 700
    if p.cls == "smem": return 900
    return max(_issue(p), 4 * (_need(p, c) + 1))

VM_GAP = 64
def _sched_region(ins):
    n = len(ins)
    if n <= 2:
        return ins
    rw = [_rw(i) for i in ins]
    preds = [dict() for _ in range(n)]
    lastw, readers = {}, {}
    for k, (r, w) in enumerate(rw):
        for x in r:
            if x in lastw:
                j = lastw[x]
                kind = "raw" if x[0] in ("v", "a", "s", "vcc", "m0") else "ord"
                preds[k][j] = max(preds[k].get(j, 0), _lat(ins[j], ins[k], kind))
        for x in w:
            if x in lastw:
                j = lastw[x]
                kind = "raw" if (x[0] in ("v", "a", "s") and ins[j].cls in ("mfma", "ds", "vmem", "smem") and not (ins[k].cls == "mfma" and ins[j].w == ins[k].srcc)) else "ord"
                preds[k][j] = max(preds[k].get(j, 0), _lat(ins[j], ins[k], kind))
            for j in readers.get(x, ()):
                if j != k:
                    preds[k][j] = max(preds[k].get(j, 0), _lat(ins[j], ins[k], "ord"))
        for x in r:
            readers.setdefault(x, []).append(k)
        for x in w:
            lastw[x] = k
            readers[x] = []
    succs = [[] for _ in range(n)]
    for k in range(n):
        for j, l in preds[k].items():
            succs[j].append((k, l))
    prio = [0.0] * n
    for k in range(n - 1, -1, -1):
        prio[k] = _issue(ins[k]) + max((l + prio[s] - _issue(ins[k]) for s, l in succs[k]), default=0)
    slow = [i.cls == "dot" or (i.op.startswith("v_pk_") and i.op.endswith(("f32", "b32"))) for i in ins]
    feeds_vm = [i.cls == "vmem" for i in ins]
    for k in range(n - 1, -1, -1):
        if ins[k].cls == "salu" and any(feeds_vm[s] for s, _ in succs[k]):
            feeds_vm[k] = True
    npred = [len(p) for p in preds]
    ready_t = [0.0] * n
    avail = [k for k in range(n) if npred[k] == 0]
    t, pipe_free, vm_free = 0.0, 0.0, 0.0
    order = []
    while avail:
        def start(k):
            s = max(t, ready_t[k])
            if ins[k].cls == "mfma":
                s = max(s, pipe_free)
            if ins[k].cls == "vmem":
                s = max(s, vm_free)
            if slow[k]:
                s = max(s, pipe_free + 12 if pipe_free else 0)
            return s
        k = min(avail, key=lambda k: (start(k) - t > 2.0, start(k) if start(k) - t > 2.0 else 0, not feeds_vm[k], -prio[k], k))
        s = start(k)
        avail.remove(k)
        order.append(k)
        t = s + _issue(ins[k])
        if ins[k].cls == "mfma":
            pipe_free = s + 4 * ins[k].passes
        if ins[k].cls == "vmem":
            vm_free = s + (VM_GAP if ins[k].op.endswith("x4") else VM_GAP / 2)
        for c, l in succs[k]:
            ready_t[c] = max(ready_t[c], s + l)
            npred[c] -= 1
            if npred[c] == 0:
                avail.append(c)
    assert len(order) == n
    _sched_region.last_t = t
    return [ins[k] for k in order]

def schedule(prog, verbose=None):
    out = Prog()
    cur = []
    def flush():
        if cur:
            out.items.extend(_sched_region(list(cur)))
            if verbose and len(cur) > 2:
                import sys
                print(f"  [{verbose}] region of {len(cur)} instrs: est {_sched_region.last_t:.0f} cycles", file=sys.stderr)
            cur.clear()
    for it in prog.items:
        if isinstance(it, tuple) or it.cls in ("ctl", "label"):
            flush(); out.items.append(it)
        else:
            cur.append(it)
    flush()
    return out

def code_prefetch(p, first, last, vt, vd, sp=60, back=False):
    Prog._lab = getattr(Prog, "_lab", 0) + 1
    lab = f"PF{Prog._lab}"
    p(f"s_getpc_b64 s[{sp}:{sp+1}]")
    p(f"{lab}:")
    if first is None:
        first = lab
    elif back:
        p(f"s_sub_u32 s{sp}, s{sp}, {lab}-{first}\ns_subb_u32 s{sp+1}, s{sp+1}, 0")
    else:
        p(f"s_add_u32 s{sp}, s{sp}, {first}-{lab}\ns_addc_u32 s{sp+1}, s{sp+1}, 0")
    p(f"""v_lshlrev_b32 v{vt}, 7, v0
          v_min_u32 v{vt}, {last}-{first}, v{vt}
          global_load_dword v{vd}, v{vt}, s[{sp}:{sp+1}]""")
```
